```python
import torch

def _softmax(x, axis=-1):
    return torch.softmax(x, dim=axis)
def _gelu(x):
    return torch.nn.functional.gelu(x, approximate="tanh")
def _silu(x):
    return torch.nn.functional.silu(x)
def _sigmoid(x):
    return torch.sigmoid(x)
def _layernorm(x, axis=-1, eps=1e-5):
    m = x.mean(dim=axis, keepdim=True)
    v = x.var(dim=axis, keepdim=True, unbiased=False)
    return (x - m) / torch.sqrt(v + eps)
def _scatter_add(tgt, idx, src, axis=0):
    return tgt.clone().index_add_(axis, idx, src)
def _segment_sum(src, seg, n):
    out = torch.zeros((n,) + src.shape[1:], dtype=src.dtype)
    return out.index_add_(0, seg, src)
def _pad(x, pw):
    flat = tuple(v for pair in reversed(pw) for v in pair)
    return torch.nn.functional.pad(x, flat)

kernel_name = 'gated_mix__mha_block_cached__glu_gated_geglu__decode'

def setup_inputs():

    _w = (lambda a: (lambda t: t.to(torch.bfloat16) if t.is_floating_point() else t)(torch.as_tensor(a)))
    def _A_setup():
        B, Sq, D = 4, 1, 640
        H, Sk, Dh = 32, 8192, 192
        return {
            "x": _w((lambda *s: torch.randn(*s, dtype=torch.bfloat16) * 0.05)(B, Sq, D)),
            "k_cache": _w((lambda *s: torch.randn(*s, dtype=torch.bfloat16) * 3.2)(B, H, Sk, Dh)),
            "v_cache": _w((lambda *s: torch.randn(*s, dtype=torch.bfloat16) * 0.05)(B, H, Sk, Dh)),
            "wq": _w((lambda *s: torch.randn(*s, dtype=torch.bfloat16) * 3.2)(D, H * Dh) * (D ** -0.5)),
            "wo": _w((lambda *s: torch.randn(*s, dtype=torch.bfloat16) * 0.05)(H * Dh, D) * ((H * Dh) ** -0.5)),
        }
    _A_in = _A_setup()

    def _B_setup():
        B, S, Dm, Df = 4, 1, 640, 1536
        return {
            "x": _w((lambda *s: torch.randn(*s, dtype=torch.bfloat16) * 0.05)(B, S, Dm)),
            "w_gate": _w((lambda *s: torch.randn(*s, dtype=torch.bfloat16) * 0.2)(Dm, Df) * (Dm ** -0.5)),
            "w_up": _w((lambda *s: torch.randn(*s, dtype=torch.bfloat16) * 0.2)(Dm, Df) * (Dm ** -0.5)),
            "w_down": _w((lambda *s: torch.randn(*s, dtype=torch.bfloat16) * 0.2)(Df, Dm) * (Df ** -0.5)),
        }
    _B_in = _B_setup()

    return {
        "A_x": _A_in["x"],
        "A_k_cache": _A_in["k_cache"],
        "A_v_cache": _A_in["v_cache"],
        "A_wq": _A_in["wq"],
        "A_wo": _A_in["wo"],
        "B_x": _B_in["x"],
        "B_w_gate": _B_in["w_gate"],
        "B_w_up": _B_in["w_up"],
        "B_w_down": _B_in["w_down"],
        "gate_w": _w((lambda *s: torch.randn(*s, dtype=torch.bfloat16) * 0.05)(640) * 16.0),
    }

def reference(A_x, A_k_cache, A_v_cache, A_wq, A_wo, B_x, B_w_gate, B_w_up, B_w_down, gate_w):
    def _A_ref(x, k_cache, v_cache, wq, wo):
        B, Sq, D = x.shape
        H, Dh = 32, 192
        q = (lambda x, *d: x.permute(*d))((x @ wq).reshape(B, Sq, H, Dh), 0, 2, 1, 3)
        scores = torch.einsum("bhqd,bhkd->bhqk", q, k_cache) * (Dh ** -0.5)
        p = _softmax(scores, axis=-1)
        o = torch.einsum("bhqk,bhkd->bhqd", p, v_cache)
        return (lambda x, *d: x.permute(*d))(o, 0, 2, 1, 3).reshape(B, Sq, H * Dh) @ wo

    def _B_ref(x, w_gate, w_up, w_down):
        g = torch.einsum("bsd,df->bsf", x, w_gate)
        u = torch.einsum("bsd,df->bsf", x, w_up)
        h = _gelu(g) * u
        return torch.einsum("bsf,fd->bsd", h, w_down)

    x = A_x
    g = _sigmoid((x * gate_w).sum(-1, keepdims=True))
    a = _A_ref(x, A_k_cache, A_v_cache, A_wq, A_wo)
    b = _B_ref(x, B_w_gate, B_w_up, B_w_down)
    return g * a + (1 - g) * b
```

```python
import sys, struct

NAME = 'gated_mix__mha_block_cached__glu_gated_geglu__decode_kernel'

def f2u(x):
    return struct.unpack('<I', struct.pack('<f', x))[0]

class G:
    def __init__(self):
        self.L = []
        self.n = 0
    def e(self, s):
        self.L.append('    ' + s)
    def lab(self, s):
        self.L.append(s + ':')
    def uid(self, p):
        self.n += 1
        return f'L_{p}_{self.n}'
    def c(self, s):
        self.L.append('    ; ' + s)

D = 4
NT = 32
TB = 6144
KV_BYTES = 402653184
WQ_BYTES = 640 * 6144 * 2
WO_BYTES = 6144 * 640 * 2
WG_BYTES = 640 * 1536 * 2
WD_BYTES = 1536 * 640 * 2
WS_PART = 0
WS_F1 = 0x80000
WS_OUTP = 0xE0000
WS_BYTES = 0x144000
L_XD = 0
L_QS = 10240
L_QZ = L_QS + 768
L_OD = 11264
L_MISC = 14336
L_DA = 14592
L_DP = L_DA + 8 * 3328
L_DP2 = L_DP + 4 * 4096
L_DQ = L_DP2 + 4 * 2048
LDS_BYTES = L_DQ + 8 * 6144
C_MERGE0 = 0
C_MERGE1 = 4
C_R1DONE = 8
C_SB1 = 12
C_SB2 = 16
C_SB3 = 20

V_TID = 0; V_LANE = 1; V_N = 2; V_G = 3; V_KOFF = 4; V_VOFF = 5
V_MASK = 6
V_L = 10; V_M = 11
V_O = 12
V_QB = 24
V_S = 36
V_PB = 44
V_T = 52
V_TILE = 64

S_X = 4; S_K = 6; S_V = 8; S_WQ = 10; S_WO = 12; S_WGATE = 16; S_WUP = 18; S_WDOWN = 20
S_GW = 22; S_OUT = 24; S_DBG = 26; S_WS = 28
S_W = 30; S_WI = 31
R_K = 32; R_V = 36; R_WS = 40; R_W = 44; R_X = 48; R_G = 52
S_H = 56; S_R = 57; S_B0 = 58; S_QT = 59; S_GRP = 60; S_B = 61; S_BH = 62
S_KOFF = 63; S_LOOP = 64; S_C = 65; S_TH = 66; S_REM = 67
S_M1 = 68; S_M2 = 70
S_T = 72
S_F = 88; S_C1 = 89; S_S1 = 90; S_CB = 91; S_SRC = 92; S_ROLE = 93


def srd(g, r, sptr, nbytes):
    g.e(f's_mov_b32 s{r}, s{sptr}')
    g.e(f's_and_b32 s{r+1}, s{sptr+1}, 0xffff')
    g.e(f's_mov_b32 s{r+2}, {nbytes}')
    g.e(f's_mov_b32 s{r+3}, 0x20000')


def vr(a, n=4):
    return f'v[{a}:{a+n-1}]'


def subbarrier(g, cofs, target=4):
    lp = g.uid('sb'); dn = g.uid('sbd')
    g.e('s_waitcnt lgkmcnt(0)')
    g.e(f'v_mov_b32 v{V_T+10}, {L_MISC + cofs}')
    g.e(f'v_mov_b32 v{V_T+11}, 1')
    g.e('s_mov_b64 exec, 1')
    g.e(f'ds_add_u32 v{V_T+10}, v{V_T+11}')
    g.e('s_mov_b64 exec, -1')
    spin_init(g)
    g.lab(lp)
    g.e(f'ds_read_b32 v{V_T+11}, v{V_T+10}')
    g.e('s_waitcnt lgkmcnt(0)')
    g.e(f'v_readfirstlane_b32 s{S_T+15}, v{V_T+11}')
    g.e('s_nop 3')
    g.e(f's_cmp_ge_u32 s{S_T+15}, {target}')
    g.e(f's_cbranch_scc1 {dn}')
    spin_guard(g, dn)
    g.e('s_sleep 1')
    g.e(f's_branch {lp}')
    g.lab(dn)


SPIN_MAX = 1 << 17
S_SPIN = 94
def spin_init(g):
    g.e(f's_mov_b32 s{S_SPIN}, {SPIN_MAX}')
def spin_guard(g, done):
    g.e(f's_sub_u32 s{S_SPIN}, s{S_SPIN}, 1')
    g.e(f's_cmp_eq_u32 s{S_SPIN}, 0')
    g.e(f's_cbranch_scc1 {done}')

def wave_sum(g, v, t, sdst):
    for off in (0x041F, 0x081F, 0x101F, 0x201F, 0x401F):
        g.e(f'ds_swizzle_b32 v{t}, v{v} offset:{off:#x}')
        g.e('s_waitcnt lgkmcnt(0)')
        g.e(f'v_add_f32 v{v}, v{v}, v{t}')
    g.e('s_nop 1')
    g.e(f'v_readlane_b32 s{sdst}, v{v}, 0')
    g.e(f'v_readlane_b32 s{sdst+1}, v{v}, 32')
    g.e('s_nop 3')
    g.e(f'v_mov_b32 v{v}, s{sdst}')
    g.e(f'v_add_f32 v{v}, s{sdst+1}, v{v}')


def tile_reg(d, kv, u, jj):
    return V_TILE + d * 48 + kv * 24 + (u * 3 + jj) * 4


def issue_k(g, d):
    for u in range(2):
        for jj in range(3):
            r = tile_reg(d, 0, u, jj)
            g.e(f'buffer_load_dwordx4 {vr(r)}, v{V_KOFF}, s[{R_K}:{R_K+3}], s{S_KOFF} offen offset:{u*3072+jj*256} nt')


def issue_v(g, d):
    for u in range(2):
        for jj in range(3):
            r = tile_reg(d, 1, u, jj)
            g.e(f'buffer_load_dwordx4 {vr(r)}, v{V_VOFF}, s[{R_V}:{R_V+3}], s{S_KOFF} offen offset:{u*3072+jj*256} nt')


def advance(g):
    g.e(f's_add_u32 s{S_KOFF}, s{S_KOFF}, {4*TB}')
    g.e(f's_sub_u32 s{S_REM}, s{S_REM}, 1')
    g.e(f's_cmp_gt_i32 s{S_REM}, 0')
    g.e(f's_cselect_b32 s{S_KOFF}, s{S_KOFF}, 0x80000000')


def raw_offsets(g, vd, voa, vob, t0, t1):
    g.e(f'v_lshrrev_b32 v{t0}, 3, v{vd}')
    g.e(f'v_and_b32 v{t1}, 7, v{vd}')
    g.e(f'v_and_b32 v{voa}, 15, v{t0}')
    g.e(f'v_lshrrev_b32 v{vob}, 2, v{voa}')
    g.e(f'v_lshlrev_b32 v{vob}, 4, v{vob}')
    g.e(f'v_add_u32 v{vob}, v{vob}, v{t1}')
    g.e(f'v_lshlrev_b32 v{vob}, 4, v{vob}')
    g.e(f'v_and_b32 v{voa}, 3, v{voa}')
    g.e(f'v_lshl_add_u32 v{voa}, v{voa}, 2, v{vob}')
    g.e(f'v_lshrrev_b32 v{vob}, 4, v{t0}')
    g.e(f'v_lshl_add_u32 v{voa}, v{vob}, 10, v{voa}')
    g.e(f'v_cmp_gt_u32 vcc, 8, v{t0}')
    g.e(f'v_add_u32 v{vob}, 8, v{t0}')
    g.e(f'v_subrev_u32 v{t0}, 8, v{t0}')
    g.e(f'v_cndmask_b32 v{t0}, v{t0}, v{vob}, vcc')
    g.e(f'v_cndmask_b32 v{vob}, 0, 1, vcc')
    g.e(f'v_lshlrev_b32 v{vob}, 10, v{vob}')
    g.e(f'v_sub_u32 v{vob}, 2048, v{vob}')
    g.e(f'v_add_u32 v{t1}, 8, v{t1}')
    g.e(f'v_and_b32 v{V_T+9}, 3, v{t0}')
    g.e(f'v_lshl_add_u32 v{vob}, v{V_T+9}, 2, v{vob}')
    g.e(f'v_lshrrev_b32 v{t0}, 2, v{t0}')
    g.e(f'v_lshl_add_u32 v{t0}, v{t0}, 4, v{t1}')
    g.e(f'v_lshl_add_u32 v{vob}, v{t0}, 4, v{vob}')


def proj_out_offset(g, vcol, vo, t0):
    g.e(f'v_lshrrev_b32 v{t0}, 3, v{vcol}')
    g.e(f'v_and_b32 v{vo}, 3, v{t0}')
    g.e(f'v_lshlrev_b32 v{vo}, 2, v{vo}')
    g.e(f'v_lshrrev_b32 v{t0}, 2, v{t0}')
    g.e(f'v_lshlrev_b32 v{t0}, 4, v{t0}')
    g.e(f'v_and_b32 v{V_T+9}, 7, v{vcol}')
    g.e(f'v_add_u32 v{t0}, v{t0}, v{V_T+9}')
    g.e(f'v_lshl_add_u32 v{vo}, v{t0}, 4, v{vo}')
    g.e(f's_and_b32 s{S_T}, s{S_WI}, 1')
    g.e(f's_lshl_b32 s{S_T}, s{S_T}, 7')
    g.e(f's_lshr_b32 s{S_T+1}, s{S_WI}, 1')
    g.e(f's_lshl_b32 s{S_T+1}, s{S_T+1}, 10')
    g.e(f's_add_u32 s{S_T}, s{S_T}, s{S_T+1}')
    g.e(f'v_add_u32 v{vo}, s{S_T}, v{vo}')


def build():
    g = G()
    e = g.e
    e(f's_cmp_ge_u32 s2, 256')
    e('s_cbranch_scc1 L_end')
    e('s_load_dwordx16 s[4:19], s[0:1], 0')
    e('s_load_dwordx8 s[20:27], s[0:1], 64')
    e('s_load_dwordx2 s[28:29], s[0:1], 96')
    e(f'v_and_b32 v{V_LANE}, 63, v0')
    e(f'v_lshrrev_b32 v{V_T}, 6, v0')
    e(f'v_and_b32 v{V_N}, 15, v{V_LANE}')
    e(f'v_lshrrev_b32 v{V_G}, 4, v{V_LANE}')
    e(f'v_readfirstlane_b32 s{S_W}, v{V_T}')
    e(f's_and_b32 s{S_T}, s2, 7')
    e(f's_lshr_b32 s{S_T+1}, s2, 3')
    e(f's_and_b32 s{S_T+2}, s{S_T+1}, 3')
    e(f's_lshl_b32 s{S_H}, s{S_T}, 2')
    e(f's_add_u32 s{S_H}, s{S_H}, s{S_T+2}')
    e(f's_lshr_b32 s{S_R}, s{S_T+1}, 2')
    e(f's_lshr_b32 s{S_B0}, s{S_R}, 2')
    e(f's_and_b32 s{S_QT}, s{S_R}, 3')
    e(f's_lshr_b32 s{S_GRP}, s{S_W}, 2')
    e(f's_and_b32 s{S_WI}, s{S_W}, 3')
    e(f's_lshl_b32 s{S_B}, s{S_GRP}, 1')
    e(f's_add_u32 s{S_B}, s{S_B}, s{S_B0}')
    e(f's_lshl_b32 s{S_BH}, s{S_B}, 5')
    e(f's_add_u32 s{S_BH}, s{S_BH}, s{S_H}')
    e(f's_mul_i32 s{S_KOFF}, s{S_BH}, 3145728')
    e(f's_mul_i32 s{S_T}, s{S_QT}, 786432')
    e(f's_add_u32 s{S_KOFF}, s{S_KOFF}, s{S_T}')
    e(f's_mul_i32 s{S_T}, s{S_WI}, {TB}')
    e(f's_add_u32 s{S_KOFF}, s{S_KOFF}, s{S_T}')
    e(f's_mov_b32 s{S_REM}, {NT}')
    e(f's_mul_i32 s{S_F}, s{S_H}, 3')
    e(f's_add_u32 s{S_F}, s{S_F}, s{S_R}')
    e(f's_sub_u32 s{S_F}, s{S_F}, 5')
    e(f's_mul_i32 s{S_S1}, s{S_F}, 43')
    e(f's_lshr_b32 s{S_S1}, s{S_S1}, 9')
    e(f's_mul_i32 s{S_T}, s{S_S1}, 12')
    e(f's_sub_u32 s{S_C1}, s{S_F}, s{S_T}')
    e(f'v_and_b32 v{V_T}, 3, v{V_N}')
    e(f'v_lshrrev_b32 v{V_T+1}, 2, v{V_N}')
    e(f'v_mul_u32_u24 v{V_KOFF}, 768, v{V_T+1}')
    e(f'v_lshl_add_u32 v{V_KOFF}, v{V_T}, 4, v{V_KOFF}')
    e(f'v_lshl_add_u32 v{V_KOFF}, v{V_G}, 6, v{V_KOFF}')
    e(f'v_mul_u32_u24 v{V_VOFF}, 768, v{V_G}')
    e(f'v_lshl_add_u32 v{V_VOFF}, v{V_N}, 4, v{V_VOFF}')
    e(f'v_and_b32 v{V_T}, 1, v{V_N}')
    e(f'v_cmp_ne_u32 s[{S_M1}:{S_M1+1}], 0, v{V_T}')
    e(f'v_and_b32 v{V_T}, 2, v{V_N}')
    e(f'v_cmp_ne_u32 s[{S_M2}:{S_M2+1}], 0, v{V_T}')
    e(f'v_mov_b32 v{V_T+1}, 0xffff')
    e(f'v_mov_b32 v{V_T+2}, 0xffff0000')
    e(f'v_cndmask_b32 v{V_T+1}, v{V_T+1}, v{V_T+2}, s[{S_M1}:{S_M1+1}]')
    e(f'v_bfe_u32 v{V_T}, v{V_N}, 1, 2')
    for i in range(4):
        e(f'v_cmp_eq_u32 vcc, {i}, v{V_T}')
        e('s_nop 1')
        e(f'v_cndmask_b32 v{V_MASK+i}, 0, v{V_T+1}, vcc')
    e(f's_mov_b32 s{S_C}, {f2u((192 ** -0.5) * 1.4426950408889634):#x}')
    e(f's_mov_b32 s{S_TH}, {f2u(8.0):#x}')
    e('s_waitcnt lgkmcnt(0)')
    srd(g, R_K, S_K, KV_BYTES)
    srd(g, R_V, S_V, KV_BYTES)
    srd(g, R_WS, S_WS, WS_BYTES)
    srd(g, R_W, S_WQ, WQ_BYTES)
    srd(g, R_X, S_X, 5120)
    srd(g, R_G, S_DBG, 256)
    g.c('clear PART slots: thread t -> grp t>>8, dword t&255')
    e(f'v_lshrrev_b32 v{V_T}, 8, v0')
    e(f'v_lshlrev_b32 v{V_T}, 18, v{V_T}')
    e(f'v_and_b32 v{V_T+1}, 255, v0')
    e(f'v_lshl_add_u32 v{V_T}, v{V_T+1}, 2, v{V_T}')
    e(f's_lshl_b32 s{S_T}, s{S_B0}, 5')
    e(f's_add_u32 s{S_T}, s{S_T}, s{S_H}')
    e(f's_lshl_b32 s{S_T}, s{S_T}, 2')
    e(f's_add_u32 s{S_T}, s{S_T}, s{S_QT}')
    e(f's_lshl_b32 s{S_T}, s{S_T}, 10')
    e(f'v_mov_b32 v{V_T+2}, -1')
    e(f'buffer_store_dword v{V_T+2}, v{V_T}, s[{R_WS}:{R_WS+3}], s{S_T} offen sc1')
    e(f'v_lshlrev_b32 v{V_T}, 2, v0')
    L_ffc = g.uid('ffc'); L_cd = g.uid('cd')
    e(f's_cmp_ge_u32 s{S_R}, 5')
    e(f's_cbranch_scc1 {L_ffc}')
    e(f's_mov_b32 s{S_CB}, s{S_R}')
    e(f's_mov_b32 s{S_SRC}, s{S_H}')
    e(f's_mov_b32 s{S_ROLE}, 0')
    e(f's_branch {L_cd}_o')
    g.lab(L_ffc)
    e(f's_lshl_b32 s{S_T}, s{S_C1}, 3')
    e(f's_add_u32 s{S_T}, s{S_T}, s{S_S1}')
    e(f's_lshl_b32 s{S_T}, s{S_T}, 12')
    e(f's_add_u32 s{S_T}, s{S_T}, {WS_F1}')
    e(f'buffer_store_dword v{V_T+2}, v{V_T}, s[{R_WS}:{R_WS+3}], s{S_T} offen sc1')
    e(f'buffer_store_dword v{V_T+2}, v{V_T}, s[{R_WS}:{R_WS+3}], s{S_T} offen offset:2048 sc1')
    e(f's_mov_b32 s{S_CB}, s{S_C1}')
    e(f's_add_u32 s{S_SRC}, s{S_S1}, 32')
    e(f's_mov_b32 s{S_ROLE}, 1')
    e(f's_cmp_ge_u32 s{S_C1}, 5')
    e(f's_cbranch_scc0 {L_cd}_o')
    e(f's_mov_b32 s{S_ROLE}, 2')
    e(f's_branch {L_cd}')
    g.lab(L_cd + '_o')
    e(f's_mul_i32 s{S_T}, s{S_CB}, 40')
    e(f's_add_u32 s{S_T}, s{S_T}, s{S_SRC}')
    e(f's_lshl_b32 s{S_T}, s{S_T}, 11')
    e(f's_add_u32 s{S_T}, s{S_T}, {WS_OUTP}')
    e(f'buffer_store_dword v{V_T+2}, v{V_T}, s[{R_WS}:{R_WS+3}], s{S_T} offen sc1')
    g.lab(L_cd)
    e(f'v_lshlrev_b32 v{V_T+3}, 4, v0')
    e(f'buffer_load_dwordx4 {vr(V_S)}, v{V_T+3}, s[{R_X}:{R_X+3}], 0 offen')
    WQR = V_TILE + 48
    VWQ = V_T + 4
    e(f'v_lshlrev_b32 v{V_T}, 1, v{V_G}')
    e(f'v_mul_u32_u24 v{V_T}, 12288, v{V_T}')
    e(f'v_lshl_add_u32 v{VWQ}, v{V_N}, 4, v{V_T}')
    e(f'v_add_u32 v{VWQ+2}, {12288 + 8*16}, v{VWQ}')
    e(f'v_cmp_gt_u32 vcc, 8, v{V_N}')
    e(f'v_add_u32 v{V_T+1}, 256, v{VWQ}')
    e(f'v_add_u32 v{V_T+2}, {12288 - 128}, v{VWQ}')
    e(f'v_cndmask_b32 v{VWQ+1}, v{V_T+2}, v{V_T+1}, vcc')
    e(f's_mul_i32 s{S_T}, s{S_W}, {80*12288}')
    e(f's_mul_i32 s{S_T+1}, s{S_H}, 384')
    e(f's_add_u32 s{S_T}, s{S_T}, s{S_T+1}')
    for t in range(10):
        for jj in range(3):
            r = WQR + (t * 3 + jj) * 4
            e(f'buffer_load_dwordx4 {vr(r)}, v{VWQ+jj}, s[{R_W}:{R_W+3}], s{S_T} offen')
        if t < 9:
            e(f's_add_u32 s{S_T}, s{S_T}, {8*12288}')
    issue_k(g, 0)
    issue_v(g, 0)
    advance(g)
    e(f'v_lshlrev_b32 v{V_T}, 2, v{V_LANE}')
    e(f'v_add_u32 v{V_T}, {L_MISC}, v{V_T}')
    e(f'v_mov_b32 v{V_T+1}, 0')
    e(f'ds_write_b32 v{V_T}, v{V_T+1}')
    e(f'v_mov_b32 v{V_T}, {L_QZ}')
    e(f'ds_write_b32 v{V_T}, v{V_T+1}')
    e(f'ds_write_b32 v{V_T}, v{V_T+1} offset:4')
    e(f'ds_write_b32 v{V_T}, v{V_T+1} offset:8')
    e(f'ds_write_b32 v{V_T}, v{V_T+1} offset:12')
    e('s_waitcnt vmcnt(42)')
    for i in range(4):
        s = V_S + i
        e(f'v_and_b32 v{V_T}, 0xffff, v{s}')
        e(f'v_lshl_or_b32 v{V_PB+2*i}, v{s}, 16, v{V_T}')
        e(f'v_lshrrev_b32 v{V_T}, 16, v{s}')
        e(f'v_and_b32 v{V_T+1}, 0xffff0000, v{s}')
        e(f'v_or_b32 v{V_PB+2*i+1}, v{V_T+1}, v{V_T}')
    e(f'v_lshlrev_b32 v{V_T}, 5, v0')
    e(f'v_cmp_gt_u32 vcc, 320, v0')
    e(f's_and_saveexec_b64 s[{S_T+2}:{S_T+3}], vcc')
    Lx = g.uid('x')
    e(f's_cbranch_execz {Lx}')
    e(f'ds_write_b128 v{V_T}, {vr(V_PB)} offset:{L_XD}')
    e(f'ds_write_b128 v{V_T}, {vr(V_PB+4)} offset:{L_XD+16}')
    g.lab(Lx)
    e(f's_mov_b64 exec, s[{S_T+2}:{S_T+3}]')
    e('s_waitcnt lgkmcnt(0)')
    e('s_barrier')
    Li = g.uid('i')
    e(f's_cmp_lg_u32 s{S_W}, 0')
    e(f's_cbranch_scc1 {Li}')
    e(f'v_mov_b32 v{V_T}, 0')
    e(f'v_mov_b32 v{V_T+1}, 1')
    e('s_mov_b64 exec, 1')
    e(f'buffer_atomic_add v{V_T+1}, v{V_T}, s[{R_G}:{R_G+3}], 0 offen')
    e('s_mov_b64 exec, -1')
    g.lab(Li)
    g.c('x values for B operands: k = 80w + 8t + 2g + (n>>3), batch b0 + 2*beta')
    XA = V_T + 4
    e(f'v_lshrrev_b32 v{XA}, 3, v{V_N}')
    e(f'v_lshl_add_u32 v{XA}, v{V_G}, 1, v{XA}')
    e(f's_mul_i32 s{S_T}, s{S_W}, 80')
    e(f's_mul_i32 s{S_T+1}, s{S_B0}, 640')
    e(f's_add_u32 s{S_T}, s{S_T}, s{S_T+1}')
    e(f'v_add_u32 v{XA}, s{S_T}, v{XA}')
    e(f'v_lshlrev_b32 v{XA}, 2, v{XA}')
    XV = V_S
    for t in range(10):
        for be in range(2):
            e(f'ds_read_b32 v{XV + t*2 + be}, v{XA} offset:{L_XD + t*32 + be*5120}')
    QD = V_O
    BT = V_T + 4
    e('s_waitcnt lgkmcnt(0)')
    for t in range(10):
        e(f's_waitcnt vmcnt({(9-t)*3 + 12})')
        for be in range(2):
            for i in range(4):
                e(f'v_and_b32 v{BT + be*4 + i}, v{XV + t*2 + be}, v{V_MASK+i}')
        e('s_nop 1')
        for be in range(2):
            for jj in range(3):
                a = WQR + (t * 3 + jj) * 4
                dd = QD + (be * 3 + jj) * 4
                cc = '0' if t == 0 else vr(dd)
                e(f'v_mfma_f32_16x16x32_bf16 {vr(dd)}, {vr(a)}, {vr(BT + be*4)}, {cc}')
    e('s_nop 7')
    e('s_nop 3')
    e(f's_mul_i32 s{S_T}, s{S_W}, 6144')
    e(f's_add_u32 s{S_T}, s{S_T}, {L_DQ}')
    e(f'v_lshlrev_b32 v{V_T}, 4, v{V_LANE}')
    e(f'v_add_u32 v{V_T}, s{S_T}, v{V_T}')
    for k in range(6):
        e(f'ds_write_b128 v{V_T}, {vr(QD + k*4)} offset:{k*1024}')
    e('s_waitcnt lgkmcnt(0)')
    e('s_barrier')
    for d in range(1, D):
        issue_k(g, d)
        issue_v(g, d)
        advance(g)
    Lq = g.uid('q')
    e(f's_cmp_eq_u32 s{S_WI}, 3')
    e(f's_cbranch_scc1 {Lq}')
    e(f's_lshl_b32 s{S_T}, s{S_WI}, 6')
    e(f'v_add_u32 v{V_T}, s{S_T}, v{V_LANE}')
    raw_offsets(g, V_T, V_T+1, V_T+2, V_T+3, V_T+4)
    e(f's_mul_i32 s{S_T}, s{S_GRP}, 3072')
    e(f's_add_u32 s{S_T}, s{S_T}, {L_DQ}')
    e(f'v_add_u32 v{V_T+1}, s{S_T}, v{V_T+1}')
    e(f'v_add_u32 v{V_T+2}, s{S_T}, v{V_T+2}')
    for wv in range(8):
        e(f'ds_read_b32 v{V_S + wv*2}, v{V_T+1} offset:{wv*6144}')
        e(f'ds_read_b32 v{V_S + wv*2 + 1}, v{V_T+2} offset:{wv*6144}')
    e('s_waitcnt lgkmcnt(0)')
    for k in range(1, 16):
        e(f'v_add_f32 v{V_S}, v{V_S}, v{V_S+k}')
    e(f'v_cvt_pk_bf16_f32 v{V_S}, v{V_S}, v{V_S}')
    e(f's_mul_i32 s{S_T}, s{S_GRP}, 384')
    e(f'v_lshlrev_b32 v{V_T}, 1, v{V_T}')
    e(f'v_add_u32 v{V_T}, s{S_T}, v{V_T}')
    e(f'ds_write_b16 v{V_T}, v{V_S} offset:{L_QS}')
    g.lab(Lq)
    e('s_waitcnt lgkmcnt(0)')
    e('s_barrier')
    e(f'v_and_b32 v{V_T}, 3, v{V_N}')
    e(f'v_lshl_add_u32 v{V_T}, v{V_G}, 2, v{V_T}')
    e(f'v_lshlrev_b32 v{V_T}, 4, v{V_T}')
    e(f's_mul_i32 s{S_T}, s{S_GRP}, 384')
    e(f's_add_u32 s{S_T}, s{S_T}, {L_QS}')
    e(f'v_add_u32 v{V_T}, s{S_T}, v{V_T}')
    e(f'v_mov_b32 v{V_T+1}, {L_QZ}')
    e(f'v_cmp_gt_u32 s[{S_T+2}:{S_T+3}], 8, v{V_N}')
    e(f'v_cmp_gt_u32 s[{S_T+4}:{S_T+5}], 2, v{V_G}')
    e('s_nop 1')
    e(f'v_cndmask_b32 v{V_T+2}, v{V_T+1}, v{V_T}, s[{S_T+2}:{S_T+3}]')
    e(f'v_add_u32 v{V_T+3}, 128, v{V_T}')
    e(f'v_cndmask_b32 v{V_T+4}, v{V_T+3}, v{V_T+1}, s[{S_T+2}:{S_T+3}]')
    e(f'v_add_u32 v{V_T+3}, 256, v{V_T}')
    e(f'v_cndmask_b32 v{V_T+3}, v{V_T+1}, v{V_T+3}, s[{S_T+4}:{S_T+5}]')
    e(f'v_subrev_u32 v{V_T+5}, 128, v{V_T}')
    e(f'v_cndmask_b32 v{V_T+5}, v{V_T+5}, v{V_T+1}, s[{S_T+4}:{S_T+5}]')
    e(f'v_cndmask_b32 v{V_T+3}, v{V_T+5}, v{V_T+3}, s[{S_T+2}:{S_T+3}]')
    e(f'ds_read_b128 {vr(V_QB)}, v{V_T+2}')
    e(f'ds_read_b128 {vr(V_QB+4)}, v{V_T+3}')
    e(f'ds_read_b128 {vr(V_QB+8)}, v{V_T+4}')
    for i in range(12):
        e(f'v_mov_b32 v{V_O+i}, 0')
    e(f'v_mov_b32 v{V_L}, 0')
    e(f'v_mov_b32 v{V_M}, 0xff800000')
    e(f's_mov_b32 s{S_LOOP}, {NT // D}')
    e('s_waitcnt lgkmcnt(0)')
    g.lab('L_main')
    NW = 6 + 12 * (D - 1)
    X0 = V_T; X1 = V_T + 1; Y0 = V_T + 2; Y1 = V_T + 3; E0 = V_T + 4; E1 = V_T + 5; MX = V_T + 6
    for d in range(D):
        Lr = f'L_resc_{d}'; Lb = f'L_back_{d}'
        e(f's_waitcnt vmcnt({NW})')
        for jj in range(3):
            for u in range(2):
                s = V_S + u * 4
                cc = '0' if jj == 0 else vr(s)
                e(f'v_mfma_f32_16x16x32_bf16 {vr(s)}, {vr(tile_reg(d,0,u,jj))}, {vr(V_QB+jj*4)}, {cc}')
        issue_k(g, d)
        e('s_nop 1')
        e(f'v_cndmask_b32 v{X0}, v{V_S+0}, v{V_S+1}, s[{S_M1}:{S_M1+1}]')
        e(f'v_cndmask_b32 v{Y0}, v{V_S+2}, v{V_S+3}, s[{S_M1}:{S_M1+1}]')
        e(f'v_cndmask_b32 v{X1}, v{V_S+4}, v{V_S+5}, s[{S_M1}:{S_M1+1}]')
        e(f'v_cndmask_b32 v{Y1}, v{V_S+6}, v{V_S+7}, s[{S_M1}:{S_M1+1}]')
        e(f'v_cndmask_b32 v{X0}, v{X0}, v{Y0}, s[{S_M2}:{S_M2+1}]')
        e(f'v_cndmask_b32 v{X1}, v{X1}, v{Y1}, s[{S_M2}:{S_M2+1}]')
        e('s_nop 0')
        e(f'v_add_f32_dpp v{X0}, v{X0}, v{X0} quad_perm:[1,0,3,2] row_mask:0xf bank_mask:0xf')
        e(f'v_add_f32_dpp v{X1}, v{X1}, v{X1} quad_perm:[1,0,3,2] row_mask:0xf bank_mask:0xf')
        e('s_nop 0')
        e(f'v_add_f32_dpp v{X0}, v{X0}, v{X0} quad_perm:[2,3,0,1] row_mask:0xf bank_mask:0xf')
        e(f'v_add_f32_dpp v{X1}, v{X1}, v{X1} quad_perm:[2,3,0,1] row_mask:0xf bank_mask:0xf')
        e(f'v_fma_f32 v{E0}, v{X0}, s{S_C}, -v{V_M}')
        e(f'v_fma_f32 v{E1}, v{X1}, s{S_C}, -v{V_M}')
        e(f'v_max_f32 v{MX}, v{E0}, v{E1}')
        e(f'v_cmp_lt_f32 vcc, s{S_TH}, v{MX}')
        e(f's_cbranch_vccnz {Lr}')
        g.lab(Lb)
        e(f'v_exp_f32 v{E0}, v{E0}')
        e(f'v_exp_f32 v{E1}, v{E1}')
        e('s_nop 0')
        e(f'v_cvt_pk_bf16_f32 v{X0}, v{E0}, v{E0}')
        e(f'v_cvt_pk_bf16_f32 v{X1}, v{E1}, v{E1}')
        e(f'v_add_f32 v{V_L}, v{V_L}, v{E0}')
        e(f'v_add_f32 v{V_L}, v{V_L}, v{E1}')
        for i in range(4):
            e(f'v_and_b32 v{V_PB+i}, v{X0}, v{V_MASK+i}')
        for i in range(4):
            e(f'v_and_b32 v{V_PB+4+i}, v{X1}, v{V_MASK+i}')
        e(f's_waitcnt vmcnt({NW})')
        for u in range(2):
            for jj in range(3):
                o = V_O + jj * 4
                e(f'v_mfma_f32_16x16x32_bf16 {vr(o)}, {vr(tile_reg(d,1,u,jj))}, {vr(V_PB+u*4)}, {vr(o)}')
        issue_v(g, d)
        advance(g)
    e(f's_sub_u32 s{S_LOOP}, s{S_LOOP}, 1')
    e(f's_cmp_lg_u32 s{S_LOOP}, 0')
    e('s_cbranch_scc1 L_main')
    e('s_branch L_fin')
    for d in range(D):
        Lr = f'L_resc_{d}'; Lb = f'L_back_{d}'
        g.lab(Lr)
        e(f'v_mul_f32 v{X0}, s{S_C}, v{X0}')
        e(f'v_mul_f32 v{X1}, s{S_C}, v{X1}')
        e(f'v_max_f32 v{MX}, v{X0}, v{X1}')
        e('s_nop 1')
        e(f'v_max_f32_dpp v{MX}, v{MX}, v{MX} row_ror:8 row_mask:0xf bank_mask:0xf')
        e('s_nop 1')
        e(f'v_readlane_b32 s{S_T}, v{MX}, 0')
        e(f'v_readlane_b32 s{S_T+1}, v{MX}, 16')
        e(f'v_readlane_b32 s{S_T+2}, v{MX}, 32')
        e(f'v_readlane_b32 s{S_T+3}, v{MX}, 48')
        e('s_nop 3')
        e(f'v_max_f32 v{MX}, s{S_T}, v{V_M}')
        e(f'v_max_f32 v{MX}, s{S_T+1}, v{MX}')
        e(f'v_max_f32 v{MX}, s{S_T+2}, v{MX}')
        e(f'v_max_f32 v{MX}, s{S_T+3}, v{MX}')
        e(f'v_sub_f32 v{Y0}, v{V_M}, v{MX}')
        e(f'v_exp_f32 v{Y0}, v{Y0}')
        e(f'v_mov_b32 v{V_M}, v{MX}')
        e('s_nop 7')
        for i in range(12):
            e(f'v_mul_f32 v{V_O+i}, v{V_O+i}, v{Y0}')
        e(f'v_mul_f32 v{V_L}, v{V_L}, v{Y0}')
        e(f'v_sub_f32 v{E0}, v{X0}, v{V_M}')
        e(f'v_sub_f32 v{E1}, v{X1}, v{V_M}')
        e(f's_branch {Lb}')
    g.lab('L_fin')
    e('s_nop 7')
    e('s_nop 3')
    e(f'v_add_f32_dpp v{V_L}, v{V_L}, v{V_L} row_ror:8 row_mask:0xf bank_mask:0xf')
    e('s_nop 1')
    e(f'v_readlane_b32 s{S_T}, v{V_L}, 0')
    e(f'v_readlane_b32 s{S_T+1}, v{V_L}, 16')
    e(f'v_readlane_b32 s{S_T+2}, v{V_L}, 32')
    e(f'v_readlane_b32 s{S_T+3}, v{V_L}, 48')
    e('s_nop 3')
    e(f'v_mov_b32 v{V_T+1}, s{S_T}')
    e(f'v_add_f32 v{V_T+1}, s{S_T+1}, v{V_T+1}')
    e(f'v_add_f32 v{V_T+1}, s{S_T+2}, v{V_T+1}')
    e(f'v_add_f32 v{V_T+1}, s{S_T+3}, v{V_T+1}')
    e(f'v_mov_b32 v{V_T}, v{V_M}')
    e(f's_mul_i32 s{S_T}, s{S_W}, 3328')
    e(f'v_lshlrev_b32 v{V_T+2}, 4, v{V_LANE}')
    e(f'v_add_u32 v{V_T+2}, s{S_T}, v{V_T+2}')
    for jj in range(3):
        e(f'ds_write_b128 v{V_T+2}, {vr(V_O+jj*4)} offset:{L_DA + jj*1024}')
    e(f'v_mov_b32 v{V_T+3}, s{S_T}')
    e(f'ds_write_b64 v{V_T+3}, v[{V_T}:{V_T+1}] offset:{L_DA + 3072}')
    Lg1 = g.uid('g1'); Lg2 = g.uid('g2')
    e(f's_cmp_eq_u32 s{S_GRP}, 0')
    e(f's_cbranch_scc0 {Lg1}')
    subbarrier(g, C_MERGE0)
    e(f's_branch {Lg2}')
    g.lab(Lg1)
    subbarrier(g, C_MERGE1)
    g.lab(Lg2)
    e(f's_mul_i32 s{S_T}, s{S_WI}, 48')
    e(f'v_add_u32 v{V_T}, s{S_T}, v{V_LANE}')
    e(f'v_min_u32 v{V_T}, 191, v{V_T}')
    raw_offsets(g, V_T, V_T+1, V_T+2, V_T+3, V_T+4)
    e(f's_mul_i32 s{S_T}, s{S_GRP}, {4*3328}')
    e(f'v_add_u32 v{V_T+1}, s{S_T}, v{V_T+1}')
    e(f'v_add_u32 v{V_T+2}, s{S_T}, v{V_T+2}')
    e(f'v_mov_b32 v{V_T+3}, s{S_T}')
    for wv in range(4):
        e(f'ds_read_b32 v{V_S+wv*2}, v{V_T+1} offset:{L_DA + wv*3328}')
        e(f'ds_read_b32 v{V_S+wv*2+1}, v{V_T+2} offset:{L_DA + wv*3328}')
        e(f'ds_read_b64 v[{V_PB+wv*2}:{V_PB+wv*2+1}], v{V_T+3} offset:{L_DA + wv*3328 + 3072}')
    e('s_waitcnt lgkmcnt(0)')
    e(f'v_max_f32 v{V_T+4}, v{V_PB}, v{V_PB+2}')
    e(f'v_max3_f32 v{V_T+4}, v{V_T+4}, v{V_PB+4}, v{V_PB+6}')
    for wv in range(4):
        e(f'v_sub_f32 v{V_PB+wv*2}, v{V_PB+wv*2}, v{V_T+4}')
        e(f'v_exp_f32 v{V_PB+wv*2}, v{V_PB+wv*2}')
        e(f'v_add_f32 v{V_S+wv*2}, v{V_S+wv*2}, v{V_S+wv*2+1}')
    e('s_nop 0')
    e(f'v_mul_f32 v{V_T+5}, v{V_S}, v{V_PB}')
    e(f'v_mul_f32 v{V_T+6}, v{V_PB+1}, v{V_PB}')
    for wv in range(1, 4):
        e(f'v_fmac_f32 v{V_T+5}, v{V_S+wv*2}, v{V_PB+wv*2}')
        e(f'v_fmac_f32 v{V_T+6}, v{V_PB+wv*2+1}, v{V_PB+wv*2}')
    e(f'v_min_u32 v{V_T+5}, -2, v{V_T+5}')
    e(f'v_min_u32 v{V_T+6}, -2, v{V_T+6}')
    e(f'v_min_u32 v{V_T+4}, -2, v{V_T+4}')
    e(f's_lshl_b32 s{S_T}, s{S_BH}, 2')
    e(f's_add_u32 s{S_T}, s{S_T}, s{S_QT}')
    e(f's_lshl_b32 s{S_T}, s{S_T}, 10')
    e(f'v_lshlrev_b32 v{V_T}, 2, v{V_T}')
    e(f'v_cmp_eq_u32 vcc, 48, v{V_LANE}')
    e(f'v_mov_b32 v{V_T+7}, 768')
    e('s_nop 0')
    e(f'v_cndmask_b32 v{V_T}, v{V_T}, v{V_T+7}, vcc')
    e(f'v_cndmask_b32 v{V_T+5}, v{V_T+5}, v{V_T+4}, vcc')
    e(f'v_cmp_eq_u32 vcc, 49, v{V_LANE}')
    e(f'v_mov_b32 v{V_T+7}, 772')
    e('s_nop 0')
    e(f'v_cndmask_b32 v{V_T}, v{V_T}, v{V_T+7}, vcc')
    e(f'v_cndmask_b32 v{V_T+5}, v{V_T+5}, v{V_T+6}, vcc')
    e(f'v_cmp_gt_u32 vcc, 50, v{V_LANE}')
    e(f's_and_saveexec_b64 s[{S_T+2}:{S_T+3}], vcc')
    e(f'buffer_store_dword v{V_T+5}, v{V_T}, s[{R_WS}:{R_WS+3}], s{S_T} offen sc1')
    e(f's_mov_b64 exec, s[{S_T+2}:{S_T+3}]')
    Lc = g.uid('cont')
    e(f's_cmp_eq_u32 s{S_GRP}, 0')
    e(f's_cbranch_scc1 {Lc}')
    e(f'v_mov_b32 v{V_T+10}, {L_MISC + C_R1DONE}')
    e(f'v_mov_b32 v{V_T+11}, 1')
    e('s_mov_b64 exec, 1')
    e(f'ds_add_u32 v{V_T+10}, v{V_T+11}')
    e('s_mov_b64 exec, -1')
    e('s_waitcnt lgkmcnt(0)')
    e('s_endpgm')
    g.lab(Lc)
    g.c('gate for batch wi')
    srd(g, R_W, S_GW, 1280)
    e(f'v_lshlrev_b32 v{V_T}, 2, v{V_LANE}')
    for i in range(5):
        e(f'buffer_load_dword v{V_S+i}, v{V_T}, s[{R_W}:{R_W+3}], 0 offen offset:{i*256}')
    e(f's_mul_i32 s{S_T}, s{S_WI}, 2560')
    e(f'v_lshlrev_b32 v{V_T+1}, 3, v{V_LANE}')
    e(f'v_add_u32 v{V_T+1}, s{S_T}, v{V_T+1}')
    for i in range(5):
        e(f'ds_read_b64 v[{V_PB+2*i if i<4 else V_T+2}:{(V_PB+2*i if i<4 else V_T+2)+1}], v{V_T+1} offset:{L_XD + i*512}')
    e('s_waitcnt vmcnt(0) lgkmcnt(0)')
    e(f'v_mov_b32 v{V_T+4}, 0')
    for i in range(5):
        xr = V_PB + 2*i if i < 4 else V_T + 2
        e(f'v_lshlrev_b32 v{V_T+5}, 16, v{V_S+i}')
        e(f'v_and_b32 v{V_T+6}, 0xffff0000, v{V_S+i}')
        e(f'v_and_b32 v{V_T+7}, 0xffff0000, v{xr}')
        e(f'v_and_b32 v{V_T+8}, 0xffff0000, v{xr+1}')
        e(f'v_fmac_f32 v{V_T+4}, v{V_T+5}, v{V_T+7}')
        e(f'v_fmac_f32 v{V_T+4}, v{V_T+6}, v{V_T+8}')
    wave_sum(g, V_T+4, V_T+5, S_T)
    V_GATE = V_L
    e(f'v_mul_f32 v{V_T+4}, {f2u(-1.4426950408889634):#x}, v{V_T+4}')
    e(f'v_exp_f32 v{V_T+4}, v{V_T+4}')
    e('s_nop 0')
    e(f'v_add_f32 v{V_T+4}, 1.0, v{V_T+4}')
    e(f'v_rcp_f32 v{V_GATE}, v{V_T+4}')
    e('s_nop 0')
    Lw = g.uid('iw'); Lwd = g.uid('iwd')
    e(f'v_mov_b32 v{V_T}, 0')
    spin_init(g)
    g.lab(Lw)
    e(f'buffer_load_dword v{V_T+1}, v{V_T}, s[{R_G}:{R_G+3}], 0 offen sc1')
    e('s_waitcnt vmcnt(0)')
    e(f'v_readfirstlane_b32 s{S_T}, v{V_T+1}')
    e('s_nop 3')
    e(f's_cmp_ge_u32 s{S_T}, 256')
    e(f's_cbranch_scc1 {Lwd}')
    spin_guard(g, Lwd)
    e('s_sleep 8')
    e(f's_branch {Lw}')
    g.lab(Lwd)
    TILE = V_TILE
    e(f's_cmp_eq_u32 s{S_ROLE}, 0')
    e('s_cbranch_scc0 L_ffn')
    srd(g, R_W, S_WO, WO_BYTES)
    e(f'v_mul_u32_u24 v{V_T}, 1280, v{V_G}')
    e(f'v_lshl_add_u32 v{V_T}, v{V_N}, 4, v{V_T}')
    e(f's_mul_i32 s{S_T}, s{S_H}, 192')
    e(f's_mul_i32 s{S_T+1}, s{S_WI}, 48')
    e(f's_add_u32 s{S_T}, s{S_T}, s{S_T+1}')
    e(f's_mul_i32 s{S_T}, s{S_T}, 1280')
    e(f's_lshl_b32 s{S_T+1}, s{S_CB}, 8')
    e(f's_add_u32 s{S_T}, s{S_T}, s{S_T+1}')
    for t in range(12):
        e(f'buffer_load_dwordx4 {vr(TILE+t*4)}, v{V_T}, s[{R_W}:{R_W+3}], s{S_T} offen')
        if t < 11:
            e(f's_add_u32 s{S_T}, s{S_T}, {4*1280}')
    Lr1 = g.uid('r1'); Lr1d = g.uid('r1d')
    e(f'v_mov_b32 v{V_T+10}, {L_MISC + C_R1DONE}')
    spin_init(g)
    g.lab(Lr1)
    e(f'ds_read_b32 v{V_T+11}, v{V_T+10}')
    e('s_waitcnt lgkmcnt(0)')
    e(f'v_readfirstlane_b32 s{S_T}, v{V_T+11}')
    e('s_nop 3')
    e(f's_cmp_ge_u32 s{S_T}, 4')
    e(f's_cbranch_scc1 {Lr1d}')
    spin_guard(g, Lr1d)
    e('s_sleep 2')
    e(f's_branch {Lr1}')
    g.lab(Lr1d)
    e(f's_lshl_b32 s{S_T}, s{S_WI}, 5')
    e(f's_add_u32 s{S_T}, s{S_T}, s{S_H}')
    e(f's_lshl_b32 s{S_T}, s{S_T}, 12')
    e(f'v_lshlrev_b32 v{V_T}, 2, v{V_LANE}')
    e(f'v_mov_b32 v{V_T+1}, 768')
    PO = V_TILE + 48
    PM = V_TILE + 60
    Lp = g.uid('pp'); Lpd = g.uid('ppd')
    spin_init(g)
    g.lab(Lp)
    for qt in range(4):
        e(f'buffer_load_dwordx2 v[{PM+qt*2}:{PM+qt*2+1}], v{V_T+1}, s[{R_WS}:{R_WS+3}], s{S_T} offen offset:{qt*1024} sc1')
    for qt in range(4):
        for j in range(3):
            e(f'buffer_load_dword v{PO+qt*3+j}, v{V_T}, s[{R_WS}:{R_WS+3}], s{S_T} offen offset:{qt*1024 + j*256} sc1')
    e('s_waitcnt vmcnt(0)')
    e(f'v_max3_u32 v{V_T+2}, v{PO}, v{PO+1}, v{PO+2}')
    for k in range(3, 19, 2):
        e(f'v_max3_u32 v{V_T+2}, v{V_T+2}, v{PO+k}, v{PO+k+1}')
    e(f'v_max_u32 v{V_T+2}, v{V_T+2}, v{PO+19}')
    e(f'v_cmp_eq_u32 vcc, -1, v{V_T+2}')
    e(f's_cbranch_vccz {Lpd}')
    spin_guard(g, Lpd)
    e('s_sleep 2')
    e(f's_branch {Lp}')
    g.lab(Lpd)
    e(f'v_max_f32 v{V_T+2}, v{PM}, v{PM+2}')
    e(f'v_max3_f32 v{V_T+2}, v{V_T+2}, v{PM+4}, v{PM+6}')
    for qt in range(4):
        e(f'v_sub_f32 v{PM+qt*2}, v{PM+qt*2}, v{V_T+2}')
        e(f'v_exp_f32 v{PM+qt*2}, v{PM+qt*2}')
    e('s_nop 0')
    e(f'v_mul_f32 v{V_T+3}, v{PM+1}, v{PM}')
    for qt in range(1, 4):
        e(f'v_fmac_f32 v{V_T+3}, v{PM+qt*2+1}, v{PM+qt*2}')
    e(f'v_rcp_f32 v{V_T+3}, v{V_T+3}')
    for j in range(3):
        e(f'v_mul_f32 v{V_T+4+j}, v{PO+j}, v{PM}')
        for qt in range(1, 4):
            e(f'v_fmac_f32 v{V_T+4+j}, v{PO+qt*3+j}, v{PM+qt*2}')
    for j in range(3):
        e(f'v_mul_f32 v{V_T+4+j}, v{V_T+4+j}, v{V_T+3}')
    e('s_branch L_od')
    g.lab('L_ffn')
    e(f'v_mul_u32_u24 v{V_T}, 3072, v{V_G}')
    e(f'v_lshl_add_u32 v{V_T}, v{V_N}, 4, v{V_T}')
    e(f's_mul_i32 s{S_T+2}, s{S_S1}, 80')
    e(f's_mul_i32 s{S_T+1}, s{S_WI}, 20')
    e(f's_add_u32 s{S_T+2}, s{S_T+2}, s{S_T+1}')
    e(f's_mul_i32 s{S_T}, s{S_T+2}, 3072')
    e(f's_lshl_b32 s{S_T+1}, s{S_C1}, 8')
    e(f's_add_u32 s{S_T}, s{S_T}, s{S_T+1}')
    FA = V_TILE + 48
    srd(g, R_W, S_WGATE, WG_BYTES)
    for t in range(5):
        e(f'buffer_load_dwordx4 {vr(FA+t*4)}, v{V_T}, s[{R_W}:{R_W+3}], s{S_T} offen')
        e(f's_add_u32 s{S_T}, s{S_T}, {4*3072}')
    e(f's_sub_u32 s{S_T}, s{S_T}, {20*3072}')
    srd(g, R_X, S_WUP, WG_BYTES)
    for t in range(5):
        e(f'buffer_load_dwordx4 {vr(FA+20+t*4)}, v{V_T}, s[{R_X}:{R_X+3}], s{S_T} offen')
        e(f's_add_u32 s{S_T}, s{S_T}, {4*3072}')
    Lnd = g.uid('nd')
    e(f's_cmp_eq_u32 s{S_ROLE}, 1')
    e(f's_cbranch_scc0 {Lnd}')
    srd(g, R_W, S_WDOWN, WD_BYTES)
    e(f'v_mul_u32_u24 v{V_T+1}, 1280, v{V_G}')
    e(f'v_lshl_add_u32 v{V_T+1}, v{V_N}, 4, v{V_T+1}')
    e(f's_mul_i32 s{S_T}, s{S_S1}, 192')
    e(f's_mul_i32 s{S_T+1}, s{S_WI}, 48')
    e(f's_add_u32 s{S_T}, s{S_T}, s{S_T+1}')
    e(f's_mul_i32 s{S_T}, s{S_T}, 1280')
    e(f's_lshl_b32 s{S_T+1}, s{S_CB}, 8')
    e(f's_add_u32 s{S_T}, s{S_T}, s{S_T+1}')
    for t in range(12):
        e(f'buffer_load_dwordx4 {vr(TILE+t*4)}, v{V_T+1}, s[{R_W}:{R_W+3}], s{S_T} offen')
        if t < 11:
            e(f's_add_u32 s{S_T}, s{S_T}, {4*1280}')
    g.lab(Lnd)
    e(f'v_lshrrev_b32 v{V_T}, 3, v{V_N}')
    e(f'v_mul_u32_u24 v{V_T}, 640, v{V_T}')
    e(f'v_add_u32 v{V_T}, v{V_T}, v{V_G}')
    e(f'v_add_u32 v{V_T}, s{S_T+2}, v{V_T}')
    e(f'v_lshlrev_b32 v{V_T}, 2, v{V_T}')
    for t in range(5):
        for P in range(2):
            e(f'ds_read_b32 v{V_TILE + 96 + t*2 + P}, v{V_T} offset:{L_XD + t*16 + P*5120}')
    e('s_waitcnt vmcnt(0) lgkmcnt(0)')
    FD = V_O
    for t in range(5):
        for P in range(2):
            for i in range(4):
                e(f'v_and_b32 v{V_PB + P*4 + i}, v{V_TILE + 96 + t*2 + P}, v{V_MASK+i}')
        e('s_nop 1')
        for mat in range(2):
            for P in range(2):
                dd = FD + (mat*2+P)*4
                cc = '0' if t == 0 else vr(dd)
                e(f'v_mfma_f32_16x16x32_bf16 {vr(dd)}, {vr(FA + mat*20 + t*4)}, {vr(V_PB+P*4)}, {cc}')
    e('s_nop 7')
    e('s_nop 3')
    e(f's_lshl_b32 s{S_T}, s{S_WI}, 12')
    e(f'v_lshlrev_b32 v{V_T}, 4, v{V_LANE}')
    e(f'v_add_u32 v{V_T}, s{S_T}, v{V_T}')
    for k in range(4):
        e(f'ds_write_b128 v{V_T}, {vr(FD+k*4)} offset:{L_DP + k*1024}')
    subbarrier(g, C_SB3)
    for jj in range(2):
        e(f'v_add_u32 v{V_T+1}, {64*jj}, v{V_LANE}')
        proj_out_offset(g, V_T+1, V_T+2+jj, V_T+4)
    for mat in range(2):
        for jj in range(2):
            for wv in range(4):
                e(f'ds_read_b32 v{V_S + (mat*2+jj)*4 + wv}, v{V_T+2+jj} offset:{L_DP + wv*4096 + mat*2048}')
    e('s_waitcnt lgkmcnt(0)')
    e(f's_lshl_b32 s{S_T}, s{S_C1}, 3')
    e(f's_add_u32 s{S_T}, s{S_T}, s{S_S1}')
    e(f's_lshl_b32 s{S_T}, s{S_T}, 12')
    e(f's_lshl_b32 s{S_T+1}, s{S_WI}, 9')
    e(f's_add_u32 s{S_T}, s{S_T}, s{S_T+1}')
    e(f's_add_u32 s{S_T}, s{S_T}, {WS_F1}')
    e(f'v_lshlrev_b32 v{V_T+1}, 2, v{V_LANE}')
    for mat in range(2):
        for jj in range(2):
            b = V_S + (mat*2+jj)*4
            e(f'v_add_f32 v{b}, v{b}, v{b+1}')
            e(f'v_add_f32 v{b+2}, v{b+2}, v{b+3}')
            e(f'v_add_f32 v{b}, v{b}, v{b+2}')
            e(f'v_min_u32 v{b}, -2, v{b}')
            e(f'buffer_store_dword v{b}, v{V_T+1}, s[{R_WS}:{R_WS+3}], s{S_T} offen offset:{mat*2048 + jj*256} sc1')
    e(f's_cmp_eq_u32 s{S_ROLE}, 1')
    e('s_cbranch_scc0 L_end')
    HG = V_TILE + 48
    Lh = g.uid('hp'); Lhd = g.uid('hpd')
    e(f'v_lshlrev_b32 v{V_T}, 2, v{V_LANE}')
    spin_init(g)
    g.lab(Lh)
    for jj in range(3):
        e(f's_mul_i32 s{S_T}, s{S_S1}, 192')
        e(f's_add_u32 s{S_T}, s{S_T}, {64*jj}')
        e(f's_lshr_b32 s{S_T+1}, s{S_T}, 7')
        e(f's_and_b32 s{S_T}, s{S_T}, 127')
        e(f's_lshl_b32 s{S_T}, s{S_T}, 2')
        e(f's_lshl_b32 s{S_T+1}, s{S_T+1}, 15')
        e(f's_add_u32 s{S_T}, s{S_T}, s{S_T+1}')
        e(f's_lshl_b32 s{S_T+1}, s{S_WI}, 9')
        e(f's_add_u32 s{S_T}, s{S_T}, s{S_T+1}')
        e(f's_add_u32 s{S_T}, s{S_T}, {WS_F1}')
        for s in range(8):
            for mat in range(2):
                e(f'buffer_load_dword v{HG + (jj*2+mat)*8 + s}, v{V_T}, s[{R_WS}:{R_WS+3}], s{S_T} offen offset:{mat*2048} sc1')
            if s < 7:
                e(f's_add_u32 s{S_T}, s{S_T}, 4096')
    e('s_waitcnt vmcnt(0)')
    e(f'v_max3_u32 v{V_T+2}, v{HG}, v{HG+1}, v{HG+2}')
    for k in range(3, 47, 2):
        e(f'v_max3_u32 v{V_T+2}, v{V_T+2}, v{HG+k}, v{HG+k+1}')
    e(f'v_max_u32 v{V_T+2}, v{V_T+2}, v{HG+47}')
    e(f'v_cmp_eq_u32 vcc, -1, v{V_T+2}')
    e(f's_cbranch_vccz {Lhd}')
    spin_guard(g, Lhd)
    e('s_sleep 16')
    e(f's_branch {Lh}')
    g.lab(Lhd)
    for jj in range(3):
        for mat in range(2):
            b = HG + (jj*2+mat)*8
            for s in range(1, 8):
                e(f'v_add_f32 v{b}, v{b}, v{b+s}')
        gg = HG + (jj*2)*8; uu = HG + (jj*2+1)*8
        e(f'v_mul_f32 v{V_T+2}, v{gg}, v{gg}')
        e(f'v_mul_f32 v{V_T+2}, {f2u(0.044715):#x}, v{V_T+2}')
        e(f'v_add_f32 v{V_T+2}, 1.0, v{V_T+2}')
        e(f'v_mul_f32 v{V_T+2}, v{V_T+2}, v{gg}')
        e(f'v_mul_f32 v{V_T+2}, {f2u(-2.0*0.7978845608028654*1.4426950408889634):#x}, v{V_T+2}')
        e(f'v_exp_f32 v{V_T+2}, v{V_T+2}')
        e('s_nop 0')
        e(f'v_add_f32 v{V_T+2}, 1.0, v{V_T+2}')
        e(f'v_rcp_f32 v{V_T+2}, v{V_T+2}')
        e('s_nop 0')
        e(f'v_mul_f32 v{V_T+2}, v{V_T+2}, v{gg}')
        e(f'v_mul_f32 v{V_T+4+jj}, v{V_T+2}, v{uu}')
    e(f'v_sub_f32 v{V_GATE}, 1.0, v{V_GATE}')
    g.lab('L_od')
    e(f's_mul_i32 s{S_T}, s{S_WI}, 768')
    e(f'v_lshlrev_b32 v{V_T}, 2, v{V_LANE}')
    e(f'v_add_u32 v{V_T}, s{S_T}, v{V_T}')
    for j in range(3):
        e(f'v_cvt_pk_bf16_f32 v{V_T+4+j}, v{V_T+4+j}, v{V_T+4+j}')
        e(f'ds_write_b32 v{V_T}, v{V_T+4+j} offset:{L_OD + j*256}')
    subbarrier(g, C_SB1)
    e(f'v_lshrrev_b32 v{V_T}, 3, v{V_N}')
    e(f'v_mul_u32_u24 v{V_T}, 192, v{V_T}')
    e(f'v_add_u32 v{V_T}, v{V_T}, v{V_G}')
    e(f's_mul_i32 s{S_T}, s{S_WI}, 48')
    e(f'v_add_u32 v{V_T}, s{S_T}, v{V_T}')
    e(f'v_lshlrev_b32 v{V_T}, 2, v{V_T}')
    BV = V_TILE + 96
    for t in range(12):
        for P in range(2):
            e(f'ds_read_b32 v{BV + t*2 + P}, v{V_T} offset:{L_OD + t*16 + P*1536}')
    e('s_waitcnt vmcnt(0) lgkmcnt(0)')
    PD = V_O
    for t in range(12):
        for P in range(2):
            for i in range(4):
                e(f'v_and_b32 v{V_QB + (t&1)*8 + P*4 + i}, v{BV + t*2 + P}, v{V_MASK+i}')
        e('s_nop 1')
        for P in range(2):
            dd = PD + P*4
            cc = '0' if t == 0 else vr(dd)
            e(f'v_mfma_f32_16x16x32_bf16 {vr(dd)}, {vr(TILE + t*4)}, {vr(V_QB + (t&1)*8 + P*4)}, {cc}')
    e('s_nop 7')
    e('s_nop 3')
    e(f's_lshl_b32 s{S_T}, s{S_WI}, 11')
    e(f'v_lshlrev_b32 v{V_T}, 4, v{V_LANE}')
    e(f'v_add_u32 v{V_T}, s{S_T}, v{V_T}')
    for P in range(2):
        e(f'ds_write_b128 v{V_T}, {vr(PD+P*4)} offset:{L_DP2 + P*1024}')
    subbarrier(g, C_SB2)
    for jj in range(2):
        e(f'v_add_u32 v{V_T+1}, {64*jj}, v{V_LANE}')
        proj_out_offset(g, V_T+1, V_T+2+jj, V_T+4)
    for jj in range(2):
        for wv in range(4):
            e(f'ds_read_b32 v{V_S + jj*4 + wv}, v{V_T+2+jj} offset:{L_DP2 + wv*2048}')
    e('s_waitcnt lgkmcnt(0)')
    e(f's_mul_i32 s{S_T}, s{S_CB}, 40')
    e(f's_add_u32 s{S_T}, s{S_T}, s{S_SRC}')
    e(f's_lshl_b32 s{S_T}, s{S_T}, 11')
    e(f's_lshl_b32 s{S_T+1}, s{S_WI}, 9')
    e(f's_add_u32 s{S_T}, s{S_T}, s{S_T+1}')
    e(f's_add_u32 s{S_T}, s{S_T}, {WS_OUTP}')
    e(f'v_lshlrev_b32 v{V_T+1}, 2, v{V_LANE}')
    for jj in range(2):
        b = V_S + jj*4
        e(f'v_add_f32 v{b}, v{b}, v{b+1}')
        e(f'v_add_f32 v{b+2}, v{b+2}, v{b+3}')
        e(f'v_add_f32 v{b}, v{b}, v{b+2}')
        e(f'v_mul_f32 v{b}, v{b}, v{V_GATE}')
        e(f'v_min_u32 v{b}, -2, v{b}')
        e(f'buffer_store_dword v{b}, v{V_T+1}, s[{R_WS}:{R_WS+3}], s{S_T} offen offset:{jj*256} sc1')
    e(f's_cmp_eq_u32 s{S_ROLE}, 0')
    e('s_cbranch_scc0 L_end')
    e(f's_cmp_eq_u32 s{S_WI}, 0')
    e('s_cbranch_scc0 L_end')
    e(f's_lshr_b32 s{S_T}, s{S_H}, 3')
    e(f's_and_b32 s{S_T+1}, s{S_H}, 7')
    e(f's_mul_i32 s{S_T+2}, s{S_CB}, {40*2048}')
    e(f's_lshl_b32 s{S_T+3}, s{S_T}, 9')
    e(f's_add_u32 s{S_T+2}, s{S_T+2}, s{S_T+3}')
    e(f's_lshl_b32 s{S_T+3}, s{S_T+1}, 6')
    e(f's_add_u32 s{S_T+2}, s{S_T+2}, s{S_T+3}')
    e(f's_add_u32 s{S_T+2}, s{S_T+2}, {WS_OUTP}')
    e(f'v_lshlrev_b32 v{V_T}, 11, v{V_G}')
    e(f'v_lshl_add_u32 v{V_T}, v{V_N}, 2, v{V_T}')
    Lf = g.uid('fp'); Lfd = g.uid('fpd')
    FR = V_S
    spin_init(g)
    g.lab(Lf)
    e(f's_mov_b32 s{S_T+4}, s{S_T+2}')
    for k in range(10):
        e(f'buffer_load_dword v{FR+k}, v{V_T}, s[{R_WS}:{R_WS+3}], s{S_T+4} offen sc1')
        if k < 9:
            e(f's_add_u32 s{S_T+4}, s{S_T+4}, {4*2048}')
    e('s_waitcnt vmcnt(0)')
    e(f'v_max3_u32 v{V_T+2}, v{FR}, v{FR+1}, v{FR+2}')
    for k in range(3, 9, 2):
        e(f'v_max3_u32 v{V_T+2}, v{V_T+2}, v{FR+k}, v{FR+k+1}')
    e(f'v_max_u32 v{V_T+2}, v{V_T+2}, v{FR+9}')
    e(f'v_cmp_eq_u32 vcc, -1, v{V_T+2}')
    e(f's_cbranch_vccz {Lfd}')
    spin_guard(g, Lfd)
    e('s_sleep 1')
    e(f's_branch {Lf}')
    g.lab(Lfd)
    for k in range(1, 10):
        e(f'v_add_f32 v{FR}, v{FR}, v{FR+k}')
    e(f'v_xor_b32 v{V_T+2}, 16, v{V_LANE}')
    e(f'v_lshlrev_b32 v{V_T+2}, 2, v{V_T+2}')
    e(f'ds_bpermute_b32 v{V_T+3}, v{V_T+2}, v{FR}')
    e('s_waitcnt lgkmcnt(0)')
    e(f'v_add_f32 v{FR}, v{FR}, v{V_T+3}')
    e(f'v_xor_b32 v{V_T+2}, 32, v{V_LANE}')
    e(f'v_lshlrev_b32 v{V_T+2}, 2, v{V_T+2}')
    e(f'ds_bpermute_b32 v{V_T+3}, v{V_T+2}, v{FR}')
    e('s_waitcnt lgkmcnt(0)')
    e(f'v_add_f32 v{FR}, v{FR}, v{V_T+3}')
    e(f'v_cvt_pk_bf16_f32 v{FR}, v{FR}, v{FR}')
    srd(g, R_W, S_OUT, 5120)
    e(f's_mul_i32 s{S_T}, s{S_T}, 640')
    e(f's_lshl_b32 s{S_T+3}, s{S_CB}, 7')
    e(f's_add_u32 s{S_T}, s{S_T}, s{S_T+3}')
    e(f's_lshl_b32 s{S_T+1}, s{S_T+1}, 4')
    e(f's_add_u32 s{S_T}, s{S_T}, s{S_T+1}')
    e(f's_lshl_b32 s{S_T}, s{S_T}, 1')
    e(f'v_lshlrev_b32 v{V_T}, 1, v{V_N}')
    e('s_mov_b64 exec, 0xffff')
    e(f'buffer_store_short v{FR}, v{V_T}, s[{R_W}:{R_W+3}], s{S_T} offen')
    g.lab('L_end')
    e('s_endpgm')
    return g


HEADER = open('gated_mix__mha_block_cached__glu_gated_geglu__decode.s.ref').read().split('\n')

def emit(path):
    g = build()
    out = []
    for line in HEADER:
        if line.startswith('; @launch'):
            out.append(f'; @launch grid=(256,1,1) block=(512,1,1) lds={LDS_BYTES}')
            continue
        out.append(line)
        if line.startswith(NAME + ':'):
            break
    out += g.L
    out += ['.section .rodata,"a"', '.p2align 6', f'.amdhsa_kernel {NAME}',
            '  .amdhsa_next_free_vgpr 256', '  .amdhsa_next_free_sgpr 96', '  .amdhsa_accum_offset 256',
            '  .amdhsa_group_segment_fixed_size 0', '  .amdhsa_kernarg_size 104', '  .amdhsa_user_sgpr_count 2',
            '  .amdhsa_user_sgpr_kernarg_segment_ptr 1', '  .amdhsa_system_sgpr_workgroup_id_x 1', '.end_amdhsa_kernel']
    open(path, 'w').write('\n'.join(out) + '\n')

if __name__ == '__main__':
    emit(sys.argv[1] if len(sys.argv) > 1 else 'gated_mix__mha_block_cached__glu_gated_geglu__decode.s')
    print('LDS', LDS_BYTES)
```

```python
import sys, struct

NAME = 'gated_mix__mha_block_cached__glu_gated_geglu__decode_kernel'

def f2u(x):
    return struct.unpack('<I', struct.pack('<f', x))[0]

class G:
    def __init__(self):
        self.L = []
        self.n = 0
    def e(self, s):
        import re
        if s.startswith('buffer_'):
            m = re.search(r'offset:(\d+)', s)
            assert not m or int(m.group(1)) < 4096, s
        if s.startswith('ds_'):
            m = re.search(r'offset:(\d+)', s)
            assert not m or int(m.group(1)) < 65536, s
        self.L.append('    ' + s)
    def lab(self, s):
        self.L.append(s + ':')
    def uid(self, p):
        self.n += 1
        return f'L_{p}_{self.n}'
    def c(self, s):
        self.L.append('    ; ' + s)

class Opt:
    TS = False
    D = 4
    PACE = 12
    PRIO = True
    NOQ = False
    NOSIDE = False
    SIDEMODE = 0
    NOCOMP = False
O = Opt

NT = 32
WPOL = 'nt'
TB = 6144
KV_BYTES = 402653184
WQ_BYTES = 640 * 6144 * 2
WO_BYTES = 6144 * 640 * 2
WG_BYTES = 640 * 1536 * 2
WD_BYTES = 1536 * 640 * 2
WS_PART = 0
WS_F1 = 0x100000
WS_OUTP = 0x1C0000
WS_QP = 0x290000
WS_EPOCH = 0x410000
WS_BYTES = 0x410100
WS_TS = 0x500000
L_QS = 0
L_QZ = 768
L_OD = 1024
L_MISC = 4096
L_DA = 4352
L_DP = L_DA + 8 * 3328
L_DP2 = L_DP + 4 * 4096
LDS_USED = L_DP2 + 4 * 2048
LDS_BYTES = 84 * 1024
C_MERGE0 = 0; C_MERGE1 = 4; C_R1DONE = 8; C_SB1 = 12; C_SB2 = 16; C_SB3 = 20; C_QA = 24; C_QRDY = 28

V_LANE = 1; V_N = 2; V_G = 3; V_KOFF = 4; V_VOFF = 5
V_MASK = 6
V_L = 10; V_M = 11
V_O = 12
V_QB = 24
V_S = 36
V_PB = 44
V_T = 52
V_TILE = 64

S_X = 4; S_K = 6; S_V = 8; S_WQ = 10; S_WO = 12; S_WGATE = 16; S_WUP = 18; S_WDOWN = 20
S_GW = 22; S_OUT = 24; S_DBG = 26; S_WS = 28
S_W = 30; S_WI = 31
R_K = 32; R_V = 36; R_WS = 40; R_W = 44; R_X = 48; R_G = 52
S_H = 56; S_R = 57; S_B0 = 58; S_QT = 59; S_GRP = 60; S_B = 61; S_BH = 62
S_KOFF = 63; S_LOOP = 64; S_C = 65; S_TH = 66; S_REM = 67
S_M1 = 68; S_M2 = 70
S_T = 72
S_F = 88; S_C1 = 89; S_S1 = 90; S_CB = 91; S_SRC = 92; S_ROLE = 93
S_SPIN = 94
S_TAG = 14
SPIN_MAX = 1 << 17


def stamp(g, k):
    if not O.TS: return
    g.e('s_memrealtime s[96:97]')
    g.e(f's_lshl_b32 s98, s2, 3')
    g.e(f's_add_u32 s98, s98, s{S_W}')
    g.e(f's_lshl_b32 s98, s98, 7')
    g.e(f's_add_u32 s98, s98, {WS_TS + k*8}')
    g.e('s_waitcnt lgkmcnt(0)')
    g.e(f'v_mov_b32 v{V_T+8}, s96')
    g.e(f'v_mov_b32 v{V_T+9}, s97')
    g.e(f'v_mov_b32 v{V_T+7}, 0')
    g.e('s_mov_b64 s[100:101], exec')
    g.e('s_mov_b64 exec, 1')
    g.e(f'buffer_store_dwordx2 v[{V_T+8}:{V_T+9}], v{V_T+7}, s[{R_WS}:{R_WS+3}], s98 offen')
    g.e('s_mov_b64 exec, s[100:101]')
    g.e('s_nop 1')

def srd(g, r, sptr, nbytes):
    g.e(f's_mov_b32 s{r}, s{sptr}')
    g.e(f's_and_b32 s{r+1}, s{sptr+1}, 0xffff')
    g.e(f's_mov_b32 s{r+2}, {nbytes}')
    g.e(f's_mov_b32 s{r+3}, 0x20000')

def vr(a, n=4):
    return f'v[{a}:{a+n-1}]'

def spin_init(g):
    g.e(f's_mov_b32 s{S_SPIN}, {SPIN_MAX}')
def spin_guard(g, done):
    g.e(f's_sub_u32 s{S_SPIN}, s{S_SPIN}, 1')
    g.e(f's_cmp_eq_u32 s{S_SPIN}, 0')
    g.e(f's_cbranch_scc1 {done}')

def lds_wait(g, cofs, target, sleep=1):
    lp = g.uid('lw'); dn = g.uid('lwd')
    g.e(f'v_mov_b32 v{V_T+10}, {L_MISC + cofs}')
    spin_init(g)
    g.lab(lp)
    g.e(f'ds_read_b32 v{V_T+11}, v{V_T+10}')
    g.e('s_waitcnt lgkmcnt(0)')
    g.e(f'v_readfirstlane_b32 s{S_T+15}, v{V_T+11}')
    g.e('s_nop 3')
    g.e(f's_cmp_ge_u32 s{S_T+15}, {target}')
    g.e(f's_cbranch_scc1 {dn}')
    spin_guard(g, dn)
    g.e(f's_sleep {sleep}')
    g.e(f's_branch {lp}')
    g.lab(dn)

def lds_inc(g, cofs):
    g.e('s_waitcnt lgkmcnt(0)')
    g.e(f'v_mov_b32 v{V_T+10}, {L_MISC + cofs}')
    g.e(f'v_mov_b32 v{V_T+11}, 1')
    g.e('s_mov_b64 exec, 1')
    g.e(f'ds_add_u32 v{V_T+10}, v{V_T+11}')
    g.e('s_mov_b64 exec, -1')

def subbarrier(g, cofs, target=4):
    lds_inc(g, cofs)
    lds_wait(g, cofs, target)

def wave_sum(g, v, t, sdst):
    for off in (0x041F, 0x081F, 0x101F, 0x201F, 0x401F):
        g.e(f'ds_swizzle_b32 v{t}, v{v} offset:{off:#x}')
        g.e('s_waitcnt lgkmcnt(0)')
        g.e(f'v_add_f32 v{v}, v{v}, v{t}')
    g.e('s_nop 1')
    g.e(f'v_readlane_b32 s{sdst}, v{v}, 0')
    g.e(f'v_readlane_b32 s{sdst+1}, v{v}, 32')
    g.e('s_nop 3')
    g.e(f'v_mov_b32 v{v}, s{sdst}')
    g.e(f'v_add_f32 v{v}, s{sdst+1}, v{v}')

def tile_reg(d, kv, u, jj):
    return V_TILE + d * 48 + kv * 24 + (u * 3 + jj) * 4

def issue_k(g, d):
    for u in range(2):
        for jj in range(3):
            r = tile_reg(d, 0, u, jj)
            g.e(f'buffer_load_dwordx4 {vr(r)}, v{V_KOFF}, s[{R_K}:{R_K+3}], s{S_KOFF} offen offset:{u*3072+jj*256} nt')

def issue_v(g, d):
    for u in range(2):
        for jj in range(3):
            r = tile_reg(d, 1, u, jj)
            g.e(f'buffer_load_dwordx4 {vr(r)}, v{V_VOFF}, s[{R_V}:{R_V+3}], s{S_KOFF} offen offset:{u*3072+jj*256} nt')

def advance(g):
    g.e(f's_add_u32 s{S_KOFF}, s{S_KOFF}, {4*TB}')
    g.e(f's_sub_u32 s{S_REM}, s{S_REM}, 1')
    g.e(f's_cmp_gt_i32 s{S_REM}, 0')
    g.e(f's_cselect_b32 s{S_KOFF}, s{S_KOFF}, 0x80000000')

def raw_offsets(g, vd, voa, vob, t0, t1):
    g.e(f'v_lshrrev_b32 v{t0}, 3, v{vd}')
    g.e(f'v_and_b32 v{t1}, 7, v{vd}')
    g.e(f'v_and_b32 v{voa}, 15, v{t0}')
    g.e(f'v_lshrrev_b32 v{vob}, 2, v{voa}')
    g.e(f'v_lshlrev_b32 v{vob}, 4, v{vob}')
    g.e(f'v_add_u32 v{vob}, v{vob}, v{t1}')
    g.e(f'v_lshlrev_b32 v{vob}, 4, v{vob}')
    g.e(f'v_and_b32 v{voa}, 3, v{voa}')
    g.e(f'v_lshl_add_u32 v{voa}, v{voa}, 2, v{vob}')
    g.e(f'v_lshrrev_b32 v{vob}, 4, v{t0}')
    g.e(f'v_lshl_add_u32 v{voa}, v{vob}, 10, v{voa}')
    g.e(f'v_cmp_gt_u32 vcc, 8, v{t0}')
    g.e(f'v_add_u32 v{vob}, 8, v{t0}')
    g.e(f'v_subrev_u32 v{t0}, 8, v{t0}')
    g.e(f'v_cndmask_b32 v{t0}, v{t0}, v{vob}, vcc')
    g.e(f'v_cndmask_b32 v{vob}, 0, 1, vcc')
    g.e(f'v_lshlrev_b32 v{vob}, 10, v{vob}')
    g.e(f'v_sub_u32 v{vob}, 2048, v{vob}')
    g.e(f'v_add_u32 v{t1}, 8, v{t1}')
    g.e(f'v_and_b32 v{V_T+9}, 3, v{t0}')
    g.e(f'v_lshl_add_u32 v{vob}, v{V_T+9}, 2, v{vob}')
    g.e(f'v_lshrrev_b32 v{t0}, 2, v{t0}')
    g.e(f'v_lshl_add_u32 v{t0}, v{t0}, 4, v{t1}')
    g.e(f'v_lshl_add_u32 v{vob}, v{t0}, 4, v{vob}')

def pair_offset(g, vo):
    t = V_T + 9
    g.e(f'v_and_b32 v{vo}, 3, v{V_LANE}')
    g.e(f'v_lshlrev_b32 v{vo}, 1, v{vo}')
    g.e(f'v_lshl_add_u32 v{vo}, v{V_G}, 4, v{vo}')
    g.e(f'v_lshlrev_b32 v{vo}, 4, v{vo}')
    g.e(f'v_bfe_u32 v{t}, v{V_LANE}, 2, 2')
    g.e(f'v_lshl_add_u32 v{vo}, v{t}, 2, v{vo}')
    g.e(f's_and_b32 s{S_T}, s{S_WI}, 1')
    g.e(f's_lshl_b32 s{S_T}, s{S_T}, 7')
    g.e(f's_lshr_b32 s{S_T+1}, s{S_WI}, 1')
    g.e(f's_lshl_b32 s{S_T+1}, s{S_T+1}, 10')
    g.e(f's_add_u32 s{S_T}, s{S_T}, s{S_T+1}')
    g.e(f'v_add_u32 v{vo}, s{S_T}, v{vo}')

def tag_check(g, regs, acc, t):
    first = True
    for r in regs:
        g.e(f'v_xor_b32 v{t}, s{S_TAG}, v{r+2}')
        if first:
            g.e(f'v_xor_b32 v{acc}, s{S_TAG+1}, v{r+3}')
            g.e(f'v_or_b32 v{acc}, v{acc}, v{t}')
            first = False
        else:
            g.e(f'v_xor_b32 v{t+1}, s{S_TAG+1}, v{r+3}')
            g.e(f'v_or3_b32 v{acc}, v{acc}, v{t}, v{t+1}')

def light_poll(g, voff, soff, nlanes, sleep, tmp):
    lp = g.uid('lp'); dn = g.uid('lpd')
    g.e(f's_mov_b64 exec, {(1 << nlanes) - 1:#x}')
    spin_init(g)
    g.lab(lp)
    g.e(f'buffer_load_dwordx4 {vr(tmp)}, v{voff}, s[{R_WS}:{R_WS+3}], s{soff} offen sc1')
    g.e('s_waitcnt vmcnt(0)')
    g.e(f'v_xor_b32 v{tmp}, s{S_TAG}, v{tmp+2}')
    g.e(f'v_xor_b32 v{tmp+1}, s{S_TAG+1}, v{tmp+3}')
    g.e(f'v_or_b32 v{tmp}, v{tmp}, v{tmp+1}')
    g.e(f'v_cmp_ne_u32 vcc, 0, v{tmp}')
    g.e(f's_cbranch_vccz {dn}')
    spin_guard(g, dn)
    g.e(f's_sleep {sleep}')
    g.e(f's_branch {lp}')
    g.lab(dn)
    g.e('s_mov_b64 exec, -1')

def store_gran(g, base, voff, soff, imm=0):
    g.e(f'v_mov_b32 v{base+2}, s{S_TAG}')
    g.e(f'v_mov_b32 v{base+3}, s{S_TAG+1}')
    g.e(f'buffer_store_dwordx4 {vr(base)}, v{voff}, s[{R_WS}:{R_WS+3}], s{soff} offen offset:{imm} sc1')


def build():
    g = G()
    e = g.e
    D = O.D
    e(f's_cmp_ge_u32 s2, 256')
    e('s_cbranch_scc1 L_end')
    e('s_load_dwordx16 s[4:19], s[0:1], 0')
    e('s_load_dwordx8 s[20:27], s[0:1], 64')
    e('s_load_dwordx2 s[28:29], s[0:1], 96')
    e(f'v_and_b32 v{V_LANE}, 63, v0')
    e(f'v_lshrrev_b32 v{V_T}, 6, v0')
    e(f'v_and_b32 v{V_N}, 15, v{V_LANE}')
    e(f'v_lshrrev_b32 v{V_G}, 4, v{V_LANE}')
    e(f'v_readfirstlane_b32 s{S_W}, v{V_T}')
    e(f's_and_b32 s{S_QT}, s2, 3')
    e(f's_bfe_u32 s{S_H}, s2, 0x50002')
    e(f's_lshr_b32 s{S_B0}, s2, 7')
    e(f's_lshl_b32 s{S_R}, s{S_B0}, 2')
    e(f's_add_u32 s{S_R}, s{S_R}, s{S_QT}')
    e(f's_lshr_b32 s{S_GRP}, s{S_W}, 2')
    e(f's_and_b32 s{S_WI}, s{S_W}, 3')
    e(f's_lshl_b32 s{S_B}, s{S_GRP}, 1')
    e(f's_add_u32 s{S_B}, s{S_B}, s{S_B0}')
    e(f's_lshl_b32 s{S_BH}, s{S_B}, 5')
    e(f's_add_u32 s{S_BH}, s{S_BH}, s{S_H}')
    e(f's_mul_i32 s{S_KOFF}, s{S_BH}, 3145728')
    e(f's_mul_i32 s{S_T}, s{S_QT}, 786432')
    e(f's_add_u32 s{S_KOFF}, s{S_KOFF}, s{S_T}')
    e(f's_mul_i32 s{S_T}, s{S_WI}, {TB}')
    e(f's_add_u32 s{S_KOFF}, s{S_KOFF}, s{S_T}')
    e(f's_mov_b32 s{S_REM}, {NT}')
    e(f's_mul_i32 s{S_F}, s{S_H}, 3')
    e(f's_add_u32 s{S_F}, s{S_F}, s{S_R}')
    e(f's_sub_u32 s{S_F}, s{S_F}, 5')
    e(f's_mul_i32 s{S_S1}, s{S_F}, 43')
    e(f's_lshr_b32 s{S_S1}, s{S_S1}, 9')
    e(f's_mul_i32 s{S_T}, s{S_S1}, 12')
    e(f's_sub_u32 s{S_C1}, s{S_F}, s{S_T}')
    e(f's_mov_b32 s{S_CB}, s{S_R}')
    e(f's_mov_b32 s{S_SRC}, s{S_H}')
    e(f's_mov_b32 s{S_ROLE}, 0')
    Lrd = g.uid('rd')
    e(f's_cmp_ge_u32 s{S_R}, 5')
    e(f's_cbranch_scc0 {Lrd}')
    e(f's_mov_b32 s{S_CB}, s{S_C1}')
    e(f's_add_u32 s{S_SRC}, s{S_S1}, 32')
    e(f's_mov_b32 s{S_ROLE}, 1')
    e(f's_cmp_ge_u32 s{S_C1}, 5')
    e(f's_cbranch_scc0 {Lrd}')
    e(f's_mov_b32 s{S_ROLE}, 2')
    g.lab(Lrd)
    e(f'v_and_b32 v{V_T}, 3, v{V_N}')
    e(f'v_lshrrev_b32 v{V_T+1}, 2, v{V_N}')
    e(f'v_mul_u32_u24 v{V_KOFF}, 768, v{V_T+1}')
    e(f'v_lshl_add_u32 v{V_KOFF}, v{V_T}, 4, v{V_KOFF}')
    e(f'v_lshl_add_u32 v{V_KOFF}, v{V_G}, 6, v{V_KOFF}')
    e(f'v_mul_u32_u24 v{V_VOFF}, 768, v{V_G}')
    e(f'v_lshl_add_u32 v{V_VOFF}, v{V_N}, 4, v{V_VOFF}')
    e(f'v_and_b32 v{V_T}, 1, v{V_N}')
    e(f'v_cmp_ne_u32 s[{S_M1}:{S_M1+1}], 0, v{V_T}')
    e(f'v_and_b32 v{V_T}, 2, v{V_N}')
    e(f'v_cmp_ne_u32 s[{S_M2}:{S_M2+1}], 0, v{V_T}')
    e(f'v_mov_b32 v{V_T+1}, 0xffff')
    e(f'v_mov_b32 v{V_T+2}, 0xffff0000')
    e(f'v_cndmask_b32 v{V_T+1}, v{V_T+1}, v{V_T+2}, s[{S_M1}:{S_M1+1}]')
    e(f'v_bfe_u32 v{V_T}, v{V_N}, 1, 2')
    for i in range(4):
        e(f'v_cmp_eq_u32 vcc, {i}, v{V_T}')
        e('s_nop 1')
        e(f'v_cndmask_b32 v{V_MASK+i}, 0, v{V_T+1}, vcc')
    e(f's_mov_b32 s{S_C}, {f2u((192 ** -0.5) * 1.4426950408889634):#x}')
    e(f's_mov_b32 s{S_TH}, {f2u(8.0):#x}')
    e(f'v_lshlrev_b32 v{V_T}, 2, v{V_LANE}')
    e(f'v_add_u32 v{V_T}, {L_MISC}, v{V_T}')
    e(f'v_mov_b32 v{V_T+1}, 0')
    e(f'ds_write_b32 v{V_T}, v{V_T+1}')
    e(f'v_mov_b32 v{V_T}, {L_QZ}')
    for k in range(4):
        e(f'ds_write_b32 v{V_T}, v{V_T+1} offset:{4*k}')
    e('s_waitcnt lgkmcnt(0)')
    e('s_barrier')
    e(f's_add_u32 s{S_T}, s{S_WS}, {WS_EPOCH}')
    e(f's_addc_u32 s{S_T+1}, s{S_WS+1}, 0')
    e(f's_load_dwordx2 s[{S_TAG}:{S_TAG+1}], s[{S_T}:{S_T+1}], 0')
    srd(g, R_K, S_K, KV_BYTES)
    srd(g, R_V, S_V, KV_BYTES)
    srd(g, R_WS, S_WS, WS_BYTES if not O.TS else WS_TS + 0x40000)
    srd(g, R_W, S_WQ, WQ_BYTES)
    srd(g, R_X, S_X, 5120)
    stamp(g, 0)
    e(f's_cmp_eq_u32 s{S_GRP}, 0')
    e('s_cbranch_scc1 L_qphase')
    groups = []
    for d in range(D):
        groups.append(('k', d)); groups.append(('v', d))
    for i, (kv, d) in enumerate(groups):
        if O.PACE and (i * 6) > O.PACE:
            e(f's_waitcnt vmcnt({O.PACE})')
        if kv == 'k':
            issue_k(g, d)
        else:
            issue_v(g, d); advance(g)
    lds_wait(g, C_QRDY, 4, sleep=1)
    e('s_branch L_qready')
    g.lab('L_qphase')
    if O.NOQ:
        e('s_waitcnt lgkmcnt(0)')
        e(f's_mul_i32 s{S_TAG}, s{S_TAG}, 0x9E3779B1')
        e(f's_add_u32 s{S_TAG}, s{S_TAG}, 0x632BE5AB')
        e(f's_lshr_b32 s{S_T+4}, s{S_TAG}, 15')
        e(f's_xor_b32 s{S_TAG+1}, s{S_TAG+1}, s{S_T+4}')
        e(f's_mul_i32 s{S_TAG+1}, s{S_TAG+1}, 0x85EBCA6B')
        e(f's_add_u32 s{S_TAG+1}, s{S_TAG+1}, 0xC2B2AE35')
        e(f'v_lshlrev_b32 v{V_T}, 2, v{V_LANE}')
        e(f'v_mov_b32 v{V_T+1}, 0')
        for k in range(3):
            e(f'ds_write_b32 v{V_T}, v{V_T+1} offset:{k*256}')
        subbarrier(g, C_QRDY)
        for d in range(D):
            issue_k(g, d); issue_v(g, d); advance(g)
        e('s_branch L_qready2')
    if O.PRIO:
        e('s_setprio 3')
    XV = V_TILE + 40
    AX = V_TILE
    AY = V_TILE + 20
    e(f'v_lshrrev_b32 v{V_T}, 3, v{V_N}')
    e(f'v_mul_u32_u24 v{V_T}, 640, v{V_T}')
    e(f'v_add_lshl_u32 v{V_T}, v{V_T}, v{V_G}, 1')
    e(f's_mul_i32 s{S_T+2}, s{S_R}, 80')
    e(f's_mul_i32 s{S_T+1}, s{S_WI}, 20')
    e(f's_add_u32 s{S_T+2}, s{S_T+2}, s{S_T+1}')
    e(f's_lshl_b32 s{S_T+1}, s{S_T+2}, 1')
    e(f'v_mul_u32_u24 v{V_T+1}, 12288, v{V_G}')
    e(f'v_lshl_add_u32 v{V_T+1}, v{V_N}, 4, v{V_T+1}')
    e(f'v_add_u32 v{V_T+2}, 256, v{V_T+1}')
    e(f'v_mov_b32 v{V_T+3}, 0x40000000')
    e(f'v_cmp_gt_u32 vcc, 8, v{V_N}')
    e(f's_mul_i32 s{S_T}, s{S_T+2}, 12288')
    e(f's_mul_i32 s{S_T+3}, s{S_H}, 384')
    e(f'v_cndmask_b32 v{V_T+2}, v{V_T+3}, v{V_T+2}, vcc')
    e(f's_add_u32 s{S_T}, s{S_T}, s{S_T+3}')
    for t in range(5):
        e(f'buffer_load_dwordx4 {vr(AX+t*4)}, v{V_T+1}, s[{R_W}:{R_W+3}], s{S_T} offen {WPOL}')
        e(f'buffer_load_dwordx4 {vr(AY+t*4)}, v{V_T+2}, s[{R_W}:{R_W+3}], s{S_T} offen {WPOL}')
        if t < 4:
            e(f's_add_u32 s{S_T}, s{S_T}, {4*12288}')
    for t in range(5):
        for P in range(2):
            e(f'buffer_load_ushort v{XV + t*2 + P}, v{V_T}, s[{R_X}:{R_X+3}], s{S_T+1} offen offset:{t*8 + P*2560}')
    e('s_waitcnt lgkmcnt(0)')
    def mix():
        e(f's_mul_i32 s{S_TAG}, s{S_TAG}, 0x9E3779B1')
        e(f's_add_u32 s{S_TAG}, s{S_TAG}, 0x632BE5AB')
        e(f's_lshr_b32 s{S_T+4}, s{S_TAG}, 15')
        e(f's_xor_b32 s{S_TAG+1}, s{S_TAG+1}, s{S_T+4}')
        e(f's_mul_i32 s{S_TAG+1}, s{S_TAG+1}, 0x85EBCA6B')
        e(f's_add_u32 s{S_TAG+1}, s{S_TAG+1}, 0xC2B2AE35')
    mix()
    e('s_waitcnt vmcnt(0)')
    stamp(g, 1)
    for k in range(10):
        e(f'v_lshl_or_b32 v{XV+k}, v{XV+k}, 16, v{XV+k}')
    QD = V_O
    for t in range(5):
        for P in range(2):
            for i in range(4):
                e(f'v_and_b32 v{V_PB + P*4 + i}, v{XV + t*2 + P}, v{V_MASK+i}')
        e('s_nop 1')
        for xy in range(2):
            for P in range(2):
                dd = QD + (xy*2+P)*4
                cc = '0' if t == 0 else vr(dd)
                a = (AX if xy == 0 else AY) + t*4
                e(f'v_mfma_f32_16x16x32_bf16 {vr(dd)}, {vr(a)}, {vr(V_PB+P*4)}, {cc}')
    e('s_nop 7')
    e('s_nop 3')
    e(f's_lshl_b32 s{S_T}, s{S_WI}, 12')
    e(f'v_lshlrev_b32 v{V_T}, 4, v{V_LANE}')
    e(f'v_add_u32 v{V_T}, s{S_T}, v{V_T}')
    for k in range(4):
        e(f'ds_write_b128 v{V_T}, {vr(QD+k*4)} offset:{L_DP + k*1024}')
    subbarrier(g, C_QA)
    stamp(g, 8)
    pair_offset(g, V_T)
    for xy in range(2):
        for el in range(2):
            for wv in range(4):
                e(f'ds_read_b32 v{V_S + (xy*2+el)*4 + wv}, v{V_T} offset:{L_DP + wv*4096 + xy*2048 + el*16}')
    e('s_waitcnt lgkmcnt(0)')
    GA = V_TILE
    for xy in range(2):
        for el in range(2):
            b = V_S + (xy*2+el)*4
            e(f'v_add_f32 v{b}, v{b}, v{b+1}')
            e(f'v_add_f32 v{b+2}, v{b+2}, v{b+3}')
            e(f'v_add_f32 v{GA + xy*4 + el}, v{b}, v{b+2}')
    e(f's_lshl_b32 s{S_T}, s{S_H}, 3')
    e(f's_add_u32 s{S_T}, s{S_T}, s{S_R}')
    e(f's_lshl_b32 s{S_T}, s{S_T}, 2')
    e(f's_add_u32 s{S_T}, s{S_T}, s{S_WI}')
    e(f's_mul_i32 s{S_T}, s{S_T}, 1536')
    e(f's_add_u32 s{S_T}, s{S_T}, {WS_QP}')
    e(f'v_lshlrev_b32 v{V_T+1}, 4, v{V_LANE}')
    store_gran(g, GA, V_T+1, S_T, 0)
    e('s_mov_b32 exec_hi, 0')
    store_gran(g, GA+4, V_T+1, S_T, 1024)
    e('s_mov_b64 exec, -1')
    stamp(g, 9)
    e(f's_lshr_b32 s{S_T+1}, s{S_WI}, 1')
    e(f's_and_b32 s{S_T+2}, s{S_WI}, 1')
    e(f's_lshl_b32 s{S_T+3}, s{S_T+1}, 1')
    e(f's_add_u32 s{S_T+3}, s{S_T+3}, s{S_B0}')
    e(f's_lshl_b32 s{S_T}, s{S_H}, 5')
    e(f's_add_u32 s{S_T}, s{S_T}, s{S_T+3}')
    e(f's_mul_i32 s{S_T}, s{S_T}, 1536')
    e(f's_mul_i32 s{S_T+3}, s{S_T+2}, {48*16}')
    e(f's_add_u32 s{S_T}, s{S_T}, s{S_T+3}')
    e(f's_add_u32 s{S_T}, s{S_T}, {WS_QP}')
    e(f'v_min_u32 v{V_T+1}, 47, v{V_LANE}')
    e(f'v_lshlrev_b32 v{V_T+1}, 4, v{V_T+1}')
    GQ = V_TILE + 8
    Lq = g.uid('qp'); Lqd = g.uid('qpd')
    spin_init(g)
    g.lab(Lq)
    e(f's_mov_b32 s{S_T+4}, s{S_T}')
    for rr in range(8):
        e(f'buffer_load_dwordx4 {vr(GQ+rr*4)}, v{V_T+1}, s[{R_WS}:{R_WS+3}], s{S_T+4} offen sc1')
        if rr < 7:
            e(f's_add_u32 s{S_T+4}, s{S_T+4}, 6144')
    e('s_waitcnt vmcnt(0)')
    tag_check(g, [GQ+rr*4 for rr in range(8)], V_T+2, V_T+3)
    e(f'v_cmp_ne_u32 vcc, 0, v{V_T+2}')
    e(f's_cbranch_vccz {Lqd}')
    spin_guard(g, Lqd)
    e('s_sleep 1')
    e(f's_branch {Lq}')
    g.lab(Lqd)
    stamp(g, 10)
    for rr in range(1, 8):
        e(f'v_add_f32 v{GQ}, v{GQ}, v{GQ+rr*4}')
        e(f'v_add_f32 v{GQ+1}, v{GQ+1}, v{GQ+rr*4+1}')
    e(f'v_cvt_pk_bf16_f32 v{GQ}, v{GQ}, v{GQ+1}')
    e(f's_mul_i32 s{S_T+1}, s{S_T+1}, 384')
    e(f's_mul_i32 s{S_T+2}, s{S_T+2}, 192')
    e(f's_add_u32 s{S_T+1}, s{S_T+1}, s{S_T+2}')
    e(f'v_min_u32 v{V_T+1}, 47, v{V_LANE}')
    e(f'v_lshlrev_b32 v{V_T+1}, 2, v{V_T+1}')
    e(f'v_add_u32 v{V_T+1}, s{S_T+1}, v{V_T+1}')
    e(f'ds_write_b32 v{V_T+1}, v{GQ} offset:{L_QS}')
    subbarrier(g, C_QRDY)
    if O.PRIO:
        e('s_setprio 0')
    for d in range(D):
        issue_k(g, d); issue_v(g, d); advance(g)
    e('s_branch L_qready2')
    g.lab('L_qready')
    e('s_waitcnt lgkmcnt(0)')
    mix()
    g.lab('L_qready2')
    stamp(g, 2)
    e(f'v_and_b32 v{V_T}, 3, v{V_N}')
    e(f'v_lshl_add_u32 v{V_T}, v{V_G}, 2, v{V_T}')
    e(f'v_lshlrev_b32 v{V_T}, 4, v{V_T}')
    e(f's_mul_i32 s{S_T}, s{S_GRP}, 384')
    e(f's_add_u32 s{S_T}, s{S_T}, {L_QS}')
    e(f'v_add_u32 v{V_T}, s{S_T}, v{V_T}')
    e(f'v_mov_b32 v{V_T+1}, {L_QZ}')
    e(f'v_cmp_gt_u32 s[{S_T+2}:{S_T+3}], 8, v{V_N}')
    e(f'v_cmp_gt_u32 s[{S_T+4}:{S_T+5}], 2, v{V_G}')
    e('s_nop 1')
    e(f'v_cndmask_b32 v{V_T+2}, v{V_T+1}, v{V_T}, s[{S_T+2}:{S_T+3}]')
    e(f'v_add_u32 v{V_T+3}, 128, v{V_T}')
    e(f'v_cndmask_b32 v{V_T+4}, v{V_T+3}, v{V_T+1}, s[{S_T+2}:{S_T+3}]')
    e(f'v_add_u32 v{V_T+3}, 256, v{V_T}')
    e(f'v_cndmask_b32 v{V_T+3}, v{V_T+1}, v{V_T+3}, s[{S_T+4}:{S_T+5}]')
    e(f'v_subrev_u32 v{V_T+5}, 128, v{V_T}')
    e(f'v_cndmask_b32 v{V_T+5}, v{V_T+5}, v{V_T+1}, s[{S_T+4}:{S_T+5}]')
    e(f'v_cndmask_b32 v{V_T+3}, v{V_T+5}, v{V_T+3}, s[{S_T+2}:{S_T+3}]')
    e(f'ds_read_b128 {vr(V_QB)}, v{V_T+2}')
    e(f'ds_read_b128 {vr(V_QB+4)}, v{V_T+3}')
    e(f'ds_read_b128 {vr(V_QB+8)}, v{V_T+4}')
    for i in range(12):
        e(f'v_mov_b32 v{V_O+i}, 0')
    e(f'v_mov_b32 v{V_L}, 0')
    e(f'v_mov_b32 v{V_M}, 0xff800000')
    e(f's_mov_b32 s{S_LOOP}, {NT // D}')
    e('s_waitcnt lgkmcnt(0)')
    g.lab('L_main')
    NW = 6 + 12 * (D - 1)
    X0 = V_T; X1 = V_T + 1; Y0 = V_T + 2; Y1 = V_T + 3; E0 = V_T + 4; E1 = V_T + 5; MX = V_T + 6
    for d in range(D):
        Lr = f'L_resc_{d}'; Lb = f'L_back_{d}'
        if O.NOCOMP:
            e(f's_waitcnt vmcnt({NW})')
            issue_k(g, d)
            e(f's_waitcnt vmcnt({NW})')
            issue_v(g, d)
            advance(g)
            g.lab(Lb)
            continue
        e(f's_waitcnt vmcnt({NW})')
        for jj in range(3):
            for u in range(2):
                s = V_S + u * 4
                cc = '0' if jj == 0 else vr(s)
                e(f'v_mfma_f32_16x16x32_bf16 {vr(s)}, {vr(tile_reg(d,0,u,jj))}, {vr(V_QB+jj*4)}, {cc}')
        issue_k(g, d)
        e('s_nop 1')
        e(f'v_cndmask_b32 v{X0}, v{V_S+0}, v{V_S+1}, s[{S_M1}:{S_M1+1}]')
        e(f'v_cndmask_b32 v{Y0}, v{V_S+2}, v{V_S+3}, s[{S_M1}:{S_M1+1}]')
        e(f'v_cndmask_b32 v{X1}, v{V_S+4}, v{V_S+5}, s[{S_M1}:{S_M1+1}]')
        e(f'v_cndmask_b32 v{Y1}, v{V_S+6}, v{V_S+7}, s[{S_M1}:{S_M1+1}]')
        e(f'v_cndmask_b32 v{X0}, v{X0}, v{Y0}, s[{S_M2}:{S_M2+1}]')
        e(f'v_cndmask_b32 v{X1}, v{X1}, v{Y1}, s[{S_M2}:{S_M2+1}]')
        e('s_nop 0')
        e(f'v_add_f32_dpp v{X0}, v{X0}, v{X0} quad_perm:[1,0,3,2] row_mask:0xf bank_mask:0xf')
        e(f'v_add_f32_dpp v{X1}, v{X1}, v{X1} quad_perm:[1,0,3,2] row_mask:0xf bank_mask:0xf')
        e('s_nop 0')
        e(f'v_add_f32_dpp v{X0}, v{X0}, v{X0} quad_perm:[2,3,0,1] row_mask:0xf bank_mask:0xf')
        e(f'v_add_f32_dpp v{X1}, v{X1}, v{X1} quad_perm:[2,3,0,1] row_mask:0xf bank_mask:0xf')
        e(f'v_fma_f32 v{E0}, v{X0}, s{S_C}, -v{V_M}')
        e(f'v_fma_f32 v{E1}, v{X1}, s{S_C}, -v{V_M}')
        e(f'v_max_f32 v{MX}, v{E0}, v{E1}')
        e(f'v_cmp_lt_f32 vcc, s{S_TH}, v{MX}')
        e(f's_cbranch_vccnz {Lr}')
        g.lab(Lb)
        e(f'v_exp_f32 v{E0}, v{E0}')
        e(f'v_exp_f32 v{E1}, v{E1}')
        e('s_nop 0')
        e(f'v_cvt_pk_bf16_f32 v{X0}, v{E0}, v{E0}')
        e(f'v_cvt_pk_bf16_f32 v{X1}, v{E1}, v{E1}')
        e(f'v_add_f32 v{V_L}, v{V_L}, v{E0}')
        e(f'v_add_f32 v{V_L}, v{V_L}, v{E1}')
        for i in range(4):
            e(f'v_and_b32 v{V_PB+i}, v{X0}, v{V_MASK+i}')
        for i in range(4):
            e(f'v_and_b32 v{V_PB+4+i}, v{X1}, v{V_MASK+i}')
        e(f's_waitcnt vmcnt({NW})')
        for u in range(2):
            for jj in range(3):
                o = V_O + jj * 4
                e(f'v_mfma_f32_16x16x32_bf16 {vr(o)}, {vr(tile_reg(d,1,u,jj))}, {vr(V_PB+u*4)}, {vr(o)}')
        issue_v(g, d)
        advance(g)
    e(f's_sub_u32 s{S_LOOP}, s{S_LOOP}, 1')
    e(f's_cmp_lg_u32 s{S_LOOP}, 0')
    e('s_cbranch_scc1 L_main')
    e('s_branch L_fin')
    for d in range(D):
        Lr = f'L_resc_{d}'; Lb = f'L_back_{d}'
        g.lab(Lr)
        e(f'v_mul_f32 v{X0}, s{S_C}, v{X0}')
        e(f'v_mul_f32 v{X1}, s{S_C}, v{X1}')
        e(f'v_max_f32 v{MX}, v{X0}, v{X1}')
        e('s_nop 1')
        e(f'v_max_f32_dpp v{MX}, v{MX}, v{MX} row_ror:8 row_mask:0xf bank_mask:0xf')
        e('s_nop 1')
        e(f'v_readlane_b32 s{S_T}, v{MX}, 0')
        e(f'v_readlane_b32 s{S_T+1}, v{MX}, 16')
        e(f'v_readlane_b32 s{S_T+2}, v{MX}, 32')
        e(f'v_readlane_b32 s{S_T+3}, v{MX}, 48')
        e('s_nop 3')
        e(f'v_max_f32 v{MX}, s{S_T}, v{V_M}')
        e(f'v_max_f32 v{MX}, s{S_T+1}, v{MX}')
        e(f'v_max_f32 v{MX}, s{S_T+2}, v{MX}')
        e(f'v_max_f32 v{MX}, s{S_T+3}, v{MX}')
        e(f'v_sub_f32 v{Y0}, v{V_M}, v{MX}')
        e(f'v_exp_f32 v{Y0}, v{Y0}')
        e(f'v_mov_b32 v{V_M}, v{MX}')
        e('s_nop 7')
        for i in range(12):
            e(f'v_mul_f32 v{V_O+i}, v{V_O+i}, v{Y0}')
        e(f'v_mul_f32 v{V_L}, v{V_L}, v{Y0}')
        e(f'v_sub_f32 v{E0}, v{X0}, v{V_M}')
        e(f'v_sub_f32 v{E1}, v{X1}, v{V_M}')
        e(f's_branch {Lb}')
    g.lab('L_fin')
    e('s_waitcnt vmcnt(0)')
    stamp(g, 3)
    e('s_nop 7')
    e('s_nop 3')
    e(f'v_add_f32_dpp v{V_L}, v{V_L}, v{V_L} row_ror:8 row_mask:0xf bank_mask:0xf')
    e('s_nop 1')
    e(f'v_readlane_b32 s{S_T}, v{V_L}, 0')
    e(f'v_readlane_b32 s{S_T+1}, v{V_L}, 16')
    e(f'v_readlane_b32 s{S_T+2}, v{V_L}, 32')
    e(f'v_readlane_b32 s{S_T+3}, v{V_L}, 48')
    e('s_nop 3')
    e(f'v_mov_b32 v{V_T+1}, s{S_T}')
    e(f'v_add_f32 v{V_T+1}, s{S_T+1}, v{V_T+1}')
    e(f'v_add_f32 v{V_T+1}, s{S_T+2}, v{V_T+1}')
    e(f'v_add_f32 v{V_T+1}, s{S_T+3}, v{V_T+1}')
    e(f'v_mov_b32 v{V_T}, v{V_M}')
    e(f's_mul_i32 s{S_T}, s{S_W}, 3328')
    e(f'v_lshlrev_b32 v{V_T+2}, 4, v{V_LANE}')
    e(f'v_add_u32 v{V_T+2}, s{S_T}, v{V_T+2}')
    for jj in range(3):
        e(f'ds_write_b128 v{V_T+2}, {vr(V_O+jj*4)} offset:{L_DA + jj*1024}')
    e(f'v_mov_b32 v{V_T+3}, s{S_T}')
    e(f'ds_write_b64 v{V_T+3}, v[{V_T}:{V_T+1}] offset:{L_DA + 3072}')
    Lg1 = g.uid('g1'); Lg2 = g.uid('g2')
    e(f's_cmp_eq_u32 s{S_GRP}, 0')
    e(f's_cbranch_scc0 {Lg1}')
    subbarrier(g, C_MERGE0)
    e(f's_branch {Lg2}')
    g.lab(Lg1)
    subbarrier(g, C_MERGE1)
    g.lab(Lg2)
    e(f's_mul_i32 s{S_T}, s{S_WI}, 48')
    e(f'v_add_u32 v{V_T}, s{S_T}, v{V_LANE}')
    e(f'v_min_u32 v{V_T}, 191, v{V_T}')
    raw_offsets(g, V_T, V_T+1, V_T+2, V_T+3, V_T+4)
    e(f's_mul_i32 s{S_T}, s{S_GRP}, {4*3328}')
    e(f'v_add_u32 v{V_T+1}, s{S_T}, v{V_T+1}')
    e(f'v_add_u32 v{V_T+2}, s{S_T}, v{V_T+2}')
    e(f'v_mov_b32 v{V_T+3}, s{S_T}')
    for wv in range(4):
        e(f'ds_read_b32 v{V_S+wv*2}, v{V_T+1} offset:{L_DA + wv*3328}')
        e(f'ds_read_b32 v{V_S+wv*2+1}, v{V_T+2} offset:{L_DA + wv*3328}')
        e(f'ds_read_b64 v[{V_PB+wv*2}:{V_PB+wv*2+1}], v{V_T+3} offset:{L_DA + wv*3328 + 3072}')
    e('s_waitcnt lgkmcnt(0)')
    e(f'v_max_f32 v{V_T+4}, v{V_PB}, v{V_PB+2}')
    e(f'v_max3_f32 v{V_T+4}, v{V_T+4}, v{V_PB+4}, v{V_PB+6}')
    for wv in range(4):
        e(f'v_sub_f32 v{V_PB+wv*2}, v{V_PB+wv*2}, v{V_T+4}')
        e(f'v_exp_f32 v{V_PB+wv*2}, v{V_PB+wv*2}')
        e(f'v_add_f32 v{V_S+wv*2}, v{V_S+wv*2}, v{V_S+wv*2+1}')
    e('s_nop 0')
    GA = V_TILE
    e(f'v_mul_f32 v{GA}, v{V_S}, v{V_PB}')
    e(f'v_mul_f32 v{V_T+6}, v{V_PB+1}, v{V_PB}')
    for wv in range(1, 4):
        e(f'v_fmac_f32 v{GA}, v{V_S+wv*2}, v{V_PB+wv*2}')
        e(f'v_fmac_f32 v{V_T+6}, v{V_PB+wv*2+1}, v{V_PB+wv*2}')
    e('s_nop 1')
    e(f'v_mov_b32_dpp v{GA+1}, v{GA} quad_perm:[1,0,3,2] row_mask:0xf bank_mask:0xf')
    e(f's_lshl_b32 s{S_T}, s{S_BH}, 2')
    e(f's_add_u32 s{S_T}, s{S_T}, s{S_QT}')
    e(f's_lshl_b32 s{S_T}, s{S_T}, 11')
    e(f'v_lshlrev_b32 v{V_T}, 3, v{V_T}')
    e(f'v_cmp_eq_u32 vcc, 48, v{V_LANE}')
    e(f'v_mov_b32 v{V_T+7}, {96*16}')
    e('s_nop 0')
    e(f'v_cndmask_b32 v{V_T}, v{V_T}, v{V_T+7}, vcc')
    e(f'v_cndmask_b32 v{GA}, v{GA}, v{V_T+4}, vcc')
    e(f'v_cndmask_b32 v{GA+1}, v{GA+1}, v{V_T+6}, vcc')
    e(f's_mov_b32 s{S_T+2}, 0x55555555')
    e(f's_mov_b32 s{S_T+3}, 0x00015555')
    e(f's_mov_b64 exec, s[{S_T+2}:{S_T+3}]')
    store_gran(g, GA, V_T, S_T, 0)
    e('s_mov_b64 exec, -1')
    stamp(g, 4)
    Lc = g.uid('cont')
    if O.NOSIDE:
        e('s_endpgm')
    e(f's_cmp_eq_u32 s{S_GRP}, 0')
    e(f's_cbranch_scc1 {Lc}')
    lds_inc(g, C_R1DONE)
    e('s_waitcnt lgkmcnt(0)')
    e('s_endpgm')
    g.lab(Lc)
    if O.SIDEMODE == 1:
        lds_wait(g, C_R1DONE, 4, sleep=2)
        e('s_endpgm')
    if O.SIDEMODE == 2:
        lds_wait(g, C_R1DONE, 4, sleep=64)
        e('s_endpgm')
    if O.SIDEMODE == 3:
        e(f's_cmp_eq_u32 s{S_ROLE}, 0')
        e('s_cbranch_scc0 L_end')
    if O.SIDEMODE == 4:
        e(f's_cmp_eq_u32 s{S_ROLE}, 0')
        e('s_cbranch_scc1 L_end')
    g.c('gate for batch wi: lane handles k = 2*lane + 128*i')
    srd(g, R_W, S_GW, 1280)
    srd(g, R_X, S_X, 5120)
    e(f'v_lshlrev_b32 v{V_T}, 2, v{V_LANE}')
    e(f's_mul_i32 s{S_T}, s{S_WI}, 1280')
    for i in range(5):
        e(f'buffer_load_dword v{V_S+i}, v{V_T}, s[{R_W}:{R_W+3}], 0 offen offset:{i*256}')
        e(f'buffer_load_dword v{V_S+5+i}, v{V_T}, s[{R_X}:{R_X+3}], s{S_T} offen offset:{i*256}')
    e('s_waitcnt vmcnt(0)')
    e(f'v_mov_b32 v{V_T+4}, 0')
    for i in range(5):
        e(f'v_lshlrev_b32 v{V_T+5}, 16, v{V_S+i}')
        e(f'v_and_b32 v{V_T+6}, 0xffff0000, v{V_S+i}')
        e(f'v_lshlrev_b32 v{V_T+7}, 16, v{V_S+5+i}')
        e(f'v_and_b32 v{V_T+8}, 0xffff0000, v{V_S+5+i}')
        e(f'v_fmac_f32 v{V_T+4}, v{V_T+5}, v{V_T+7}')
        e(f'v_fmac_f32 v{V_T+4}, v{V_T+6}, v{V_T+8}')
    wave_sum(g, V_T+4, V_T+5, S_T)
    V_GATE = V_L
    e(f'v_mul_f32 v{V_T+4}, {f2u(-1.4426950408889634):#x}, v{V_T+4}')
    e(f'v_exp_f32 v{V_T+4}, v{V_T+4}')
    e('s_nop 0')
    e(f'v_add_f32 v{V_T+4}, 1.0, v{V_T+4}')
    e(f'v_rcp_f32 v{V_GATE}, v{V_T+4}')
    e('s_nop 0')
    TILE = V_TILE
    e(f's_cmp_eq_u32 s{S_ROLE}, 0')
    e('s_cbranch_scc0 L_ffn')
    srd(g, R_W, S_WO, WO_BYTES)
    e(f'v_mul_u32_u24 v{V_T}, 1280, v{V_G}')
    e(f'v_lshl_add_u32 v{V_T}, v{V_N}, 4, v{V_T}')
    e(f's_mul_i32 s{S_T}, s{S_H}, 192')
    e(f's_mul_i32 s{S_T+1}, s{S_WI}, 48')
    e(f's_add_u32 s{S_T}, s{S_T}, s{S_T+1}')
    e(f's_mul_i32 s{S_T}, s{S_T}, 1280')
    e(f's_lshl_b32 s{S_T+1}, s{S_CB}, 8')
    e(f's_add_u32 s{S_T}, s{S_T}, s{S_T+1}')
    for t in range(12):
        e(f'buffer_load_dwordx4 {vr(TILE+t*4)}, v{V_T}, s[{R_W}:{R_W+3}], s{S_T} offen {WPOL}')
        if t < 11:
            e(f's_add_u32 s{S_T}, s{S_T}, {4*1280}')
    lds_wait(g, C_R1DONE, 4, sleep=2)
    stamp(g, 5)
    if O.SIDEMODE == 3:
        e('s_endpgm')
    e(f's_lshl_b32 s{S_T}, s{S_WI}, 5')
    e(f's_add_u32 s{S_T}, s{S_T}, s{S_H}')
    e(f's_lshl_b32 s{S_T}, s{S_T}, 13')
    e(f's_add_u32 s{S_T+1}, s{S_T}, 4096')
    e(f'v_lshlrev_b32 v{V_T}, 4, v{V_LANE}')
    e(f'v_min_u32 v{V_T+1}, 31, v{V_LANE}')
    e(f'v_lshlrev_b32 v{V_T+1}, 4, v{V_T+1}')
    e(f'v_add_u32 v{V_T+1}, 1024, v{V_T+1}')
    e(f'v_mov_b32 v{V_T+2}, {96*16}')
    PG = V_TILE + 48
    e(f'v_lshlrev_b32 v{V_T+3}, 11, v{V_LANE}')
    e(f'v_add_u32 v{V_T+3}, {96*16}, v{V_T+3}')
    light_poll(g, V_T+3, S_T, 4, 2, PG)
    Lp = g.uid('pp'); Lpd = g.uid('ppd')
    spin_init(g)
    g.lab(Lp)
    for qt in range(4):
        for j in range(3):
            e(f'buffer_load_dwordx4 {vr(PG+(qt*3+j)*4)}, v{V_T+j}, s[{R_WS}:{R_WS+3}], s{S_T + (qt>>1)} offen offset:{(qt&1)*2048} sc1')
    e('s_waitcnt vmcnt(0)')
    tag_check(g, [PG+k*4 for k in range(12)], V_T+3, V_T+4)
    e(f'v_cmp_ne_u32 vcc, 0, v{V_T+3}')
    e(f's_cbranch_vccz {Lpd}')
    spin_guard(g, Lpd)
    e('s_sleep 2')
    e(f's_branch {Lp}')
    g.lab(Lpd)
    stamp(g, 6)
    def PM(qt): return PG + (qt*3+2)*4
    def PO(qt, j): return PG + (qt*3+j)*4
    e(f'v_max_f32 v{V_T+2}, v{PM(0)}, v{PM(1)}')
    e(f'v_max3_f32 v{V_T+2}, v{V_T+2}, v{PM(2)}, v{PM(3)}')
    for qt in range(4):
        e(f'v_sub_f32 v{PM(qt)}, v{PM(qt)}, v{V_T+2}')
        e(f'v_exp_f32 v{PM(qt)}, v{PM(qt)}')
    e('s_nop 0')
    e(f'v_mul_f32 v{V_T+3}, v{PM(0)+1}, v{PM(0)}')
    for qt in range(1, 4):
        e(f'v_fmac_f32 v{V_T+3}, v{PM(qt)+1}, v{PM(qt)}')
    e(f'v_rcp_f32 v{V_T+3}, v{V_T+3}')
    for j in range(2):
        for el in range(2):
            dst = V_T + 4 + j*2 + el
            e(f'v_mul_f32 v{dst}, v{PO(0,j)+el}, v{PM(0)}')
            for qt in range(1, 4):
                e(f'v_fmac_f32 v{dst}, v{PO(qt,j)+el}, v{PM(qt)}')
    for k in range(4):
        e(f'v_mul_f32 v{V_T+4+k}, v{V_T+4+k}, v{V_T+3}')
    e('s_branch L_od')
    g.lab('L_ffn')
    e(f'v_mul_u32_u24 v{V_T}, 3072, v{V_G}')
    e(f'v_lshl_add_u32 v{V_T}, v{V_N}, 4, v{V_T}')
    e(f's_mul_i32 s{S_T+2}, s{S_S1}, 80')
    e(f's_mul_i32 s{S_T+1}, s{S_WI}, 20')
    e(f's_add_u32 s{S_T+2}, s{S_T+2}, s{S_T+1}')
    e(f's_mul_i32 s{S_T}, s{S_T+2}, 3072')
    e(f's_lshl_b32 s{S_T+1}, s{S_C1}, 8')
    e(f's_add_u32 s{S_T}, s{S_T}, s{S_T+1}')
    FA = V_TILE + 48
    srd(g, R_W, S_WGATE, WG_BYTES)
    for t in range(5):
        e(f'buffer_load_dwordx4 {vr(FA+t*4)}, v{V_T}, s[{R_W}:{R_W+3}], s{S_T} offen {WPOL}')
        e(f's_add_u32 s{S_T}, s{S_T}, {4*3072}')
    e(f's_sub_u32 s{S_T}, s{S_T}, {20*3072}')
    srd(g, R_G, S_WUP, WG_BYTES)
    for t in range(5):
        e(f'buffer_load_dwordx4 {vr(FA+20+t*4)}, v{V_T}, s[{R_G}:{R_G+3}], s{S_T} offen {WPOL}')
        e(f's_add_u32 s{S_T}, s{S_T}, {4*3072}')
    XF = V_TILE + 96
    e(f'v_lshrrev_b32 v{V_T+1}, 3, v{V_N}')
    e(f'v_mul_u32_u24 v{V_T+1}, 640, v{V_T+1}')
    e(f'v_add_lshl_u32 v{V_T+1}, v{V_T+1}, v{V_G}, 1')
    e(f's_lshl_b32 s{S_T+1}, s{S_T+2}, 1')
    for t in range(5):
        for P in range(2):
            e(f'buffer_load_ushort v{XF + t*2 + P}, v{V_T+1}, s[{R_X}:{R_X+3}], s{S_T+1} offen offset:{t*8 + P*2560}')
    Lnd = g.uid('nd')
    e(f's_cmp_eq_u32 s{S_ROLE}, 1')
    e(f's_cbranch_scc0 {Lnd}')
    srd(g, R_W, S_WDOWN, WD_BYTES)
    e(f'v_mul_u32_u24 v{V_T+1}, 1280, v{V_G}')
    e(f'v_lshl_add_u32 v{V_T+1}, v{V_N}, 4, v{V_T+1}')
    e(f's_mul_i32 s{S_T}, s{S_S1}, 192')
    e(f's_mul_i32 s{S_T+1}, s{S_WI}, 48')
    e(f's_add_u32 s{S_T}, s{S_T}, s{S_T+1}')
    e(f's_mul_i32 s{S_T}, s{S_T}, 1280')
    e(f's_lshl_b32 s{S_T+1}, s{S_CB}, 8')
    e(f's_add_u32 s{S_T}, s{S_T}, s{S_T+1}')
    for t in range(12):
        e(f'buffer_load_dwordx4 {vr(TILE+t*4)}, v{V_T+1}, s[{R_W}:{R_W+3}], s{S_T} offen {WPOL}')
        if t < 11:
            e(f's_add_u32 s{S_T}, s{S_T}, {4*1280}')
    g.lab(Lnd)
    e('s_waitcnt vmcnt(0)')
    for k in range(10):
        e(f'v_lshl_or_b32 v{XF+k}, v{XF+k}, 16, v{XF+k}')
    FD = V_O
    for t in range(5):
        for P in range(2):
            for i in range(4):
                e(f'v_and_b32 v{V_PB + P*4 + i}, v{XF + t*2 + P}, v{V_MASK+i}')
        e('s_nop 1')
        for mat in range(2):
            for P in range(2):
                dd = FD + (mat*2+P)*4
                cc = '0' if t == 0 else vr(dd)
                e(f'v_mfma_f32_16x16x32_bf16 {vr(dd)}, {vr(FA + mat*20 + t*4)}, {vr(V_PB+P*4)}, {cc}')
    e('s_nop 7')
    e('s_nop 3')
    e(f's_lshl_b32 s{S_T}, s{S_WI}, 12')
    e(f'v_lshlrev_b32 v{V_T}, 4, v{V_LANE}')
    e(f'v_add_u32 v{V_T}, s{S_T}, v{V_T}')
    for k in range(4):
        e(f'ds_write_b128 v{V_T}, {vr(FD+k*4)} offset:{L_DP + k*1024}')
    subbarrier(g, C_SB3)
    pair_offset(g, V_T)
    for mat in range(2):
        for el in range(2):
            for wv in range(4):
                e(f'ds_read_b32 v{V_S + (mat*2+el)*4 + wv}, v{V_T} offset:{L_DP + wv*4096 + mat*2048 + el*16}')
    e('s_waitcnt lgkmcnt(0)')
    e(f's_lshl_b32 s{S_T}, s{S_C1}, 3')
    e(f's_add_u32 s{S_T}, s{S_T}, s{S_S1}')
    e(f's_lshl_b32 s{S_T}, s{S_T}, 13')
    e(f's_lshl_b32 s{S_T+1}, s{S_WI}, 10')
    e(f's_add_u32 s{S_T}, s{S_T}, s{S_T+1}')
    e(f's_add_u32 s{S_T}, s{S_T}, {WS_F1}')
    e(f'v_lshlrev_b32 v{V_T+1}, 4, v{V_LANE}')
    for mat in range(2):
        ga = V_TILE + 48 + mat*4
        for el in range(2):
            b = V_S + (mat*2+el)*4
            e(f'v_add_f32 v{b}, v{b}, v{b+1}')
            e(f'v_add_f32 v{b+2}, v{b+2}, v{b+3}')
            e(f'v_add_f32 v{ga+el}, v{b}, v{b+2}')
        e(f's_add_u32 s{S_T+1}, s{S_T}, {mat*4096}')
        store_gran(g, ga, V_T+1, S_T+1, 0)
    e(f's_cmp_eq_u32 s{S_ROLE}, 1')
    e('s_cbranch_scc0 L_end')
    e('s_nop 1')
    HG = V_TILE + 48
    Lh = g.uid('hp'); Lhd = g.uid('hpd')
    for jj in range(3):
        e(f's_mul_i32 s{S_T+4+jj}, s{S_S1}, 192')
        e(f's_add_u32 s{S_T+4+jj}, s{S_T+4+jj}, {64*jj}')
        e(f's_lshr_b32 s{S_T+1}, s{S_T+4+jj}, 7')
        e(f's_and_b32 s{S_T+4+jj}, s{S_T+4+jj}, 127')
        e(f's_lshl_b32 s{S_T+4+jj}, s{S_T+4+jj}, 3')
        e(f's_lshl_b32 s{S_T+1}, s{S_T+1}, 16')
        e(f's_add_u32 s{S_T+4+jj}, s{S_T+4+jj}, s{S_T+1}')
    e(f'v_and_b32 v{V_T}, 31, v{V_LANE}')
    e(f'v_lshlrev_b32 v{V_T}, 4, v{V_T}')
    e(f'v_mov_b32 v{V_T+1}, s{S_T+4}')
    e(f'v_mov_b32 v{V_T+2}, s{S_T+5}')
    e(f'v_cmp_gt_u32 vcc, 32, v{V_LANE}')
    e('s_nop 1')
    e(f'v_cndmask_b32 v{V_T+1}, v{V_T+2}, v{V_T+1}, vcc')
    e(f'v_add_u32 v{V_T+1}, v{V_T+1}, v{V_T}')
    e(f'v_add_u32 v{V_T+2}, s{S_T+6}, v{V_T}')
    e(f's_lshl_b32 s{S_T}, s{S_WI}, 10')
    e(f's_add_u32 s{S_T}, s{S_T}, {WS_F1}')
    e(f's_mul_i32 s{S_T+1}, s{S_S1}, 192')
    e(f's_lshr_b32 s{S_T+1}, s{S_T+1}, 7')
    e(f's_lshl_b32 s{S_T+1}, s{S_T+1}, 16')
    e(f'v_lshlrev_b32 v{V_T+3}, 13, v{V_LANE}')
    e(f'v_add_u32 v{V_T+3}, s{S_T+1}, v{V_T+3}')
    light_poll(g, V_T+3, S_T, 16, 32, HG)
    spin_init(g)
    g.lab(Lh)
    e(f's_mov_b32 s{S_T+1}, s{S_T}')
    for s in range(8):
        for mat in range(2):
            e(f's_add_u32 s{S_T+2}, s{S_T+1}, {mat*4096}')
            for ab in range(2):
                e(f'buffer_load_dwordx4 {vr(HG + ((ab*2+mat)*8+s)*4)}, v{V_T+1+ab}, s[{R_WS}:{R_WS+3}], s{S_T+2} offen sc1')
        if s < 7:
            e(f's_add_u32 s{S_T+1}, s{S_T+1}, 8192')
    e('s_waitcnt vmcnt(0)')
    tag_check(g, [HG+k*4 for k in range(32)], V_T+3, V_T+4)
    e(f'v_cmp_ne_u32 vcc, 0, v{V_T+3}')
    e(f's_cbranch_vccz {Lhd}')
    spin_guard(g, Lhd)
    e('s_sleep 16')
    e(f's_branch {Lh}')
    g.lab(Lhd)
    for ab in range(2):
        for el in range(2):
            for mat in range(2):
                b = HG + ((ab*2+mat)*8)*4 + el
                for s in range(1, 8):
                    e(f'v_add_f32 v{b}, v{b}, v{b+s*4}')
            gg = HG + ((ab*2+0)*8)*4 + el; uu = HG + ((ab*2+1)*8)*4 + el
            e(f'v_mul_f32 v{V_T+2}, v{gg}, v{gg}')
            e(f'v_mul_f32 v{V_T+2}, {f2u(0.044715):#x}, v{V_T+2}')
            e(f'v_add_f32 v{V_T+2}, 1.0, v{V_T+2}')
            e(f'v_mul_f32 v{V_T+2}, v{V_T+2}, v{gg}')
            e(f'v_mul_f32 v{V_T+2}, {f2u(-2.0*0.7978845608028654*1.4426950408889634):#x}, v{V_T+2}')
            e(f'v_exp_f32 v{V_T+2}, v{V_T+2}')
            e('s_nop 0')
            e(f'v_add_f32 v{V_T+2}, 1.0, v{V_T+2}')
            e(f'v_rcp_f32 v{V_T+2}, v{V_T+2}')
            e('s_nop 0')
            e(f'v_mul_f32 v{V_T+2}, v{V_T+2}, v{gg}')
            e(f'v_mul_f32 v{V_T+4+ab*2+el}, v{V_T+2}, v{uu}')
    e(f'v_sub_f32 v{V_GATE}, 1.0, v{V_GATE}')
    g.lab('L_od')
    e(f's_mul_i32 s{S_T}, s{S_WI}, 768')
    e(f'v_lshlrev_b32 v{V_T}, 3, v{V_LANE}')
    e(f'v_add_u32 v{V_T}, s{S_T}, v{V_T}')
    for k in range(4):
        e(f'v_cvt_pk_bf16_f32 v{V_T+4+k}, v{V_T+4+k}, v{V_T+4+k}')
    e(f'ds_write_b64 v{V_T}, v[{V_T+4}:{V_T+5}] offset:{L_OD}')
    e('s_mov_b32 exec_hi, 0')
    e(f'ds_write_b64 v{V_T}, v[{V_T+6}:{V_T+7}] offset:{L_OD + 512}')
    e('s_mov_b64 exec, -1')
    subbarrier(g, C_SB1)
    e(f'v_lshrrev_b32 v{V_T}, 3, v{V_N}')
    e(f'v_mul_u32_u24 v{V_T}, 192, v{V_T}')
    e(f'v_add_u32 v{V_T}, v{V_T}, v{V_G}')
    e(f's_mul_i32 s{S_T}, s{S_WI}, 48')
    e(f'v_add_u32 v{V_T}, s{S_T}, v{V_T}')
    e(f'v_lshlrev_b32 v{V_T}, 2, v{V_T}')
    BV = V_TILE + 96
    for t in range(12):
        for P in range(2):
            e(f'ds_read_b32 v{BV + t*2 + P}, v{V_T} offset:{L_OD + t*16 + P*1536}')
    e('s_waitcnt vmcnt(0) lgkmcnt(0)')
    PD = V_O
    for t in range(12):
        for P in range(2):
            for i in range(4):
                e(f'v_and_b32 v{V_QB + (t&1)*8 + P*4 + i}, v{BV + t*2 + P}, v{V_MASK+i}')
        e('s_nop 1')
        for P in range(2):
            dd = PD + P*4
            cc = '0' if t == 0 else vr(dd)
            e(f'v_mfma_f32_16x16x32_bf16 {vr(dd)}, {vr(TILE + t*4)}, {vr(V_QB + (t&1)*8 + P*4)}, {cc}')
    e('s_nop 7')
    e('s_nop 3')
    e(f's_lshl_b32 s{S_T}, s{S_WI}, 11')
    e(f'v_lshlrev_b32 v{V_T}, 4, v{V_LANE}')
    e(f'v_add_u32 v{V_T}, s{S_T}, v{V_T}')
    for P in range(2):
        e(f'ds_write_b128 v{V_T}, {vr(PD+P*4)} offset:{L_DP2 + P*1024}')
    subbarrier(g, C_SB2)
    pair_offset(g, V_T)
    for el in range(2):
        for wv in range(4):
            e(f'ds_read_b32 v{V_S + el*4 + wv}, v{V_T} offset:{L_DP2 + wv*2048 + el*16}')
    e('s_waitcnt lgkmcnt(0)')
    e(f's_mul_i32 s{S_T}, s{S_CB}, 40')
    e(f's_add_u32 s{S_T}, s{S_T}, s{S_SRC}')
    e(f's_lshl_b32 s{S_T}, s{S_T}, 12')
    e(f's_lshl_b32 s{S_T+1}, s{S_WI}, 10')
    e(f's_add_u32 s{S_T}, s{S_T}, s{S_T+1}')
    e(f's_add_u32 s{S_T}, s{S_T}, {WS_OUTP}')
    e(f'v_lshlrev_b32 v{V_T+1}, 4, v{V_LANE}')
    ga = V_TILE + 48
    for el in range(2):
        b = V_S + el*4
        e(f'v_add_f32 v{b}, v{b}, v{b+1}')
        e(f'v_add_f32 v{b+2}, v{b+2}, v{b+3}')
        e(f'v_add_f32 v{b}, v{b}, v{b+2}')
        e(f'v_mul_f32 v{ga+el}, v{b}, v{V_GATE}')
    store_gran(g, ga, V_T+1, S_T, 0)
    e(f's_cmp_eq_u32 s{S_ROLE}, 0')
    e('s_cbranch_scc0 L_end')
    e(f's_cmp_eq_u32 s{S_WI}, 0')
    e('s_cbranch_scc0 L_end')
    e(f's_lshr_b32 s{S_T}, s{S_H}, 3')
    e(f's_and_b32 s{S_T+1}, s{S_H}, 7')
    e(f's_mul_i32 s{S_T+2}, s{S_CB}, {40*4096}')
    e(f's_lshl_b32 s{S_T+3}, s{S_T}, 10')
    e(f's_add_u32 s{S_T+2}, s{S_T+2}, s{S_T+3}')
    e(f's_lshl_b32 s{S_T+3}, s{S_T+1}, 7')
    e(f's_add_u32 s{S_T+2}, s{S_T+2}, s{S_T+3}')
    e(f's_add_u32 s{S_T+2}, s{S_T+2}, {WS_OUTP}')
    e(f'v_lshrrev_b32 v{V_T}, 3, v{V_LANE}')
    e(f'v_lshlrev_b32 v{V_T}, 12, v{V_T}')
    e(f'v_and_b32 v{V_T+1}, 7, v{V_LANE}')
    e(f'v_lshl_add_u32 v{V_T}, v{V_T+1}, 4, v{V_T}')
    Lf = g.uid('fp'); Lfd = g.uid('fpd')
    FR = V_TILE + 64
    spin_init(g)
    g.lab(Lf)
    e(f's_mov_b32 s{S_T+4}, s{S_T+2}')
    for k in range(5):
        e(f'buffer_load_dwordx4 {vr(FR+k*4)}, v{V_T}, s[{R_WS}:{R_WS+3}], s{S_T+4} offen sc1')
        if k < 4:
            e(f's_add_u32 s{S_T+4}, s{S_T+4}, {8*4096}')
    e('s_waitcnt vmcnt(0)')
    tag_check(g, [FR+k*4 for k in range(5)], V_T+2, V_T+3)
    e(f'v_cmp_ne_u32 vcc, 0, v{V_T+2}')
    e(f's_cbranch_vccz {Lfd}')
    spin_guard(g, Lfd)
    e('s_sleep 1')
    e(f's_branch {Lf}')
    g.lab(Lfd)
    for k in range(1, 5):
        e(f'v_add_f32 v{FR}, v{FR}, v{FR+k*4}')
        e(f'v_add_f32 v{FR+1}, v{FR+1}, v{FR+k*4+1}')
    for xm in (8, 16, 32):
        e(f'v_xor_b32 v{V_T+2}, {xm}, v{V_LANE}')
        e(f'v_lshlrev_b32 v{V_T+2}, 2, v{V_T+2}')
        e(f'ds_bpermute_b32 v{V_T+3}, v{V_T+2}, v{FR}')
        e(f'ds_bpermute_b32 v{V_T+4}, v{V_T+2}, v{FR+1}')
        e('s_waitcnt lgkmcnt(0)')
        e(f'v_add_f32 v{FR}, v{FR}, v{V_T+3}')
        e(f'v_add_f32 v{FR+1}, v{FR+1}, v{V_T+4}')
    e(f'v_cvt_pk_bf16_f32 v{FR}, v{FR}, v{FR+1}')
    srd(g, R_W, S_OUT, 5120)
    e(f's_mul_i32 s{S_T}, s{S_T}, 640')
    e(f's_lshl_b32 s{S_T+3}, s{S_CB}, 7')
    e(f's_add_u32 s{S_T}, s{S_T}, s{S_T+3}')
    e(f's_lshl_b32 s{S_T+1}, s{S_T+1}, 4')
    e(f's_add_u32 s{S_T}, s{S_T}, s{S_T+1}')
    e(f's_lshl_b32 s{S_T}, s{S_T}, 1')
    e(f'v_lshlrev_b32 v{V_T}, 2, v{V_LANE}')
    e('s_mov_b64 exec, 0xff')
    e(f'buffer_store_dword v{FR}, v{V_T}, s[{R_W}:{R_W+3}], s{S_T} offen')
    e('s_mov_b64 exec, -1')
    stamp(g, 7)
    e(f's_cmp_eq_u32 s2, 0')
    e('s_cbranch_scc0 L_end')
    e(f'v_mov_b32 v{V_T}, s{S_TAG}')
    e(f'v_mov_b32 v{V_T+1}, s{S_TAG+1}')
    e(f'v_mov_b32 v{V_T+2}, {WS_EPOCH}')
    e('s_mov_b64 exec, 1')
    e(f'buffer_store_dwordx2 v[{V_T}:{V_T+1}], v{V_T+2}, s[{R_WS}:{R_WS+3}], 0 offen')
    g.lab('L_end')
    e('s_endpgm')
    return g


HEADER = open('gated_mix__mha_block_cached__glu_gated_geglu__decode.s.ref').read().split('\n')

def emit(path):
    g = build()
    out = []
    for line in HEADER:
        if line.startswith('; @launch'):
            out.append(f'; @launch grid=(256,1,1) block=(512,1,1) lds={LDS_BYTES}')
            continue
        out.append(line)
        if line.startswith(NAME + ':'):
            break
    out += g.L
    out += ['.section .rodata,"a"', '.p2align 6', f'.amdhsa_kernel {NAME}',
            '  .amdhsa_next_free_vgpr 256', '  .amdhsa_next_free_sgpr 102', '  .amdhsa_accum_offset 256',
            '  .amdhsa_group_segment_fixed_size 0', '  .amdhsa_kernarg_size 104', '  .amdhsa_user_sgpr_count 2',
            '  .amdhsa_user_sgpr_kernarg_segment_ptr 1', '  .amdhsa_system_sgpr_workgroup_id_x 1', '.end_amdhsa_kernel']
    open(path, 'w').write('\n'.join(out) + '\n')

if __name__ == '__main__':
    args = sys.argv[1:]
    path = 'gated_mix__mha_block_cached__glu_gated_geglu__decode.s'
    for a in args:
        if a == '--ts': O.TS = True
        elif a.startswith('--D='): O.D = int(a[4:])
        elif a.startswith('--pace='): O.PACE = int(a[7:])
        elif a == '--noprio': O.PRIO = False
        elif a == '--noq': O.NOQ = True
        elif a.startswith('--side='): O.SIDEMODE = int(a[7:])
        elif a == '--noside': O.NOSIDE = True
        elif a == '--nocomp': O.NOCOMP = True
        else: path = a
    emit(path)
    print('LDS', LDS_BYTES, 'used', LDS_USED)
```

```python
import sys, struct

NAME = 'gated_mix__mha_block_cached__glu_gated_geglu__decode_kernel'

def f2u(x):
    return struct.unpack('<I', struct.pack('<f', x))[0]

class G:
    def __init__(self):
        self.L = []
        self.n = 0
    def e(self, s):
        self.L.append('    ' + s)
    def lab(self, s):
        self.L.append(s + ':')
    def uid(self, p):
        self.n += 1
        return f'L_{p}_{self.n}'
    def c(self, s):
        self.L.append('    ; ' + s)

D = 4
NT = 32
TB = 6144
KV_BYTES = 402653184
WQ_BYTES = 640 * 6144 * 2
WO_BYTES = 6144 * 640 * 2
WG_BYTES = 640 * 1536 * 2
WD_BYTES = 1536 * 640 * 2
WS_PART = 0
WS_F1 = 0x80000
WS_OUTP = 0xE0000
WS_BYTES = 0x144000
L_XD = 0
L_QS = 10240
L_QZ = L_QS + 768
L_OD = 11264
L_MISC = 14336
L_DA = 14592
L_DP = L_DA + 8 * 3328
L_DP2 = L_DP + 4 * 4096
L_DQ = L_DP2 + 4 * 2048
LDS_BYTES = L_DQ + 8 * 6144
C_MERGE0 = 0
C_MERGE1 = 4
C_R1DONE = 8
C_SB1 = 12
C_SB2 = 16
C_SB3 = 20

V_TID = 0; V_LANE = 1; V_N = 2; V_G = 3; V_KOFF = 4; V_VOFF = 5
V_MASK = 6
V_L = 10; V_M = 11
V_O = 12
V_QB = 24
V_S = 36
V_PB = 44
V_T = 52
V_TILE = 64

S_X = 4; S_K = 6; S_V = 8; S_WQ = 10; S_WO = 12; S_WGATE = 16; S_WUP = 18; S_WDOWN = 20
S_GW = 22; S_OUT = 24; S_DBG = 26; S_WS = 28
S_W = 30; S_WI = 31
R_K = 32; R_V = 36; R_WS = 40; R_W = 44; R_X = 48; R_G = 52
S_H = 56; S_R = 57; S_B0 = 58; S_QT = 59; S_GRP = 60; S_B = 61; S_BH = 62
S_KOFF = 63; S_LOOP = 64; S_C = 65; S_TH = 66; S_REM = 67
S_M1 = 68; S_M2 = 70
S_T = 72
S_F = 88; S_C1 = 89; S_S1 = 90; S_CB = 91; S_SRC = 92; S_ROLE = 93


TS = False
def stamp(g, k):
    if not TS: return
    g.e('s_memrealtime s[96:97]')
    g.e(f's_lshl_b32 s98, s2, 3')
    g.e(f's_add_u32 s98, s98, s{S_W}')
    g.e(f's_lshl_b32 s98, s98, 6')
    g.e(f's_add_u32 s98, s98, {0x200000 + k*8}')
    g.e('s_waitcnt lgkmcnt(0)')
    g.e(f'v_mov_b32 v{V_T+8}, s96')
    g.e(f'v_mov_b32 v{V_T+9}, s97')
    g.e(f'v_mov_b32 v{V_T+7}, 0')
    g.e('s_mov_b64 s[100:101], exec')
    g.e('s_mov_b64 exec, 1')
    g.e(f'buffer_store_dwordx2 v[{V_T+8}:{V_T+9}], v{V_T+7}, s[{R_WS}:{R_WS+3}], s98 offen')
    g.e('s_mov_b64 exec, s[100:101]')
    g.e('s_nop 1')

def srd(g, r, sptr, nbytes):
    g.e(f's_mov_b32 s{r}, s{sptr}')
    g.e(f's_and_b32 s{r+1}, s{sptr+1}, 0xffff')
    g.e(f's_mov_b32 s{r+2}, {nbytes}')
    g.e(f's_mov_b32 s{r+3}, 0x20000')


def vr(a, n=4):
    return f'v[{a}:{a+n-1}]'


def subbarrier(g, cofs, target=4):
    lp = g.uid('sb'); dn = g.uid('sbd')
    g.e('s_waitcnt lgkmcnt(0)')
    g.e(f'v_mov_b32 v{V_T+10}, {L_MISC + cofs}')
    g.e(f'v_mov_b32 v{V_T+11}, 1')
    g.e('s_mov_b64 exec, 1')
    g.e(f'ds_add_u32 v{V_T+10}, v{V_T+11}')
    g.e('s_mov_b64 exec, -1')
    spin_init(g)
    g.lab(lp)
    g.e(f'ds_read_b32 v{V_T+11}, v{V_T+10}')
    g.e('s_waitcnt lgkmcnt(0)')
    g.e(f'v_readfirstlane_b32 s{S_T+15}, v{V_T+11}')
    g.e('s_nop 3')
    g.e(f's_cmp_ge_u32 s{S_T+15}, {target}')
    g.e(f's_cbranch_scc1 {dn}')
    spin_guard(g, dn)
    g.e('s_sleep 1')
    g.e(f's_branch {lp}')
    g.lab(dn)


SPIN_MAX = 1 << 17
S_SPIN = 94
def spin_init(g):
    g.e(f's_mov_b32 s{S_SPIN}, {SPIN_MAX}')
def spin_guard(g, done):
    g.e(f's_sub_u32 s{S_SPIN}, s{S_SPIN}, 1')
    g.e(f's_cmp_eq_u32 s{S_SPIN}, 0')
    g.e(f's_cbranch_scc1 {done}')

def wave_sum(g, v, t, sdst):
    for off in (0x041F, 0x081F, 0x101F, 0x201F, 0x401F):
        g.e(f'ds_swizzle_b32 v{t}, v{v} offset:{off:#x}')
        g.e('s_waitcnt lgkmcnt(0)')
        g.e(f'v_add_f32 v{v}, v{v}, v{t}')
    g.e('s_nop 1')
    g.e(f'v_readlane_b32 s{sdst}, v{v}, 0')
    g.e(f'v_readlane_b32 s{sdst+1}, v{v}, 32')
    g.e('s_nop 3')
    g.e(f'v_mov_b32 v{v}, s{sdst}')
    g.e(f'v_add_f32 v{v}, s{sdst+1}, v{v}')


def tile_reg(d, kv, u, jj):
    return V_TILE + d * 48 + kv * 24 + (u * 3 + jj) * 4


def issue_k(g, d):
    for u in range(2):
        for jj in range(3):
            r = tile_reg(d, 0, u, jj)
            g.e(f'buffer_load_dwordx4 {vr(r)}, v{V_KOFF}, s[{R_K}:{R_K+3}], s{S_KOFF} offen offset:{u*3072+jj*256} nt')


def issue_v(g, d):
    for u in range(2):
        for jj in range(3):
            r = tile_reg(d, 1, u, jj)
            g.e(f'buffer_load_dwordx4 {vr(r)}, v{V_VOFF}, s[{R_V}:{R_V+3}], s{S_KOFF} offen offset:{u*3072+jj*256} nt')


def advance(g):
    g.e(f's_add_u32 s{S_KOFF}, s{S_KOFF}, {4*TB}')
    g.e(f's_sub_u32 s{S_REM}, s{S_REM}, 1')
    g.e(f's_cmp_gt_i32 s{S_REM}, 0')
    g.e(f's_cselect_b32 s{S_KOFF}, s{S_KOFF}, 0x80000000')


def raw_offsets(g, vd, voa, vob, t0, t1):
    g.e(f'v_lshrrev_b32 v{t0}, 3, v{vd}')
    g.e(f'v_and_b32 v{t1}, 7, v{vd}')
    g.e(f'v_and_b32 v{voa}, 15, v{t0}')
    g.e(f'v_lshrrev_b32 v{vob}, 2, v{voa}')
    g.e(f'v_lshlrev_b32 v{vob}, 4, v{vob}')
    g.e(f'v_add_u32 v{vob}, v{vob}, v{t1}')
    g.e(f'v_lshlrev_b32 v{vob}, 4, v{vob}')
    g.e(f'v_and_b32 v{voa}, 3, v{voa}')
    g.e(f'v_lshl_add_u32 v{voa}, v{voa}, 2, v{vob}')
    g.e(f'v_lshrrev_b32 v{vob}, 4, v{t0}')
    g.e(f'v_lshl_add_u32 v{voa}, v{vob}, 10, v{voa}')
    g.e(f'v_cmp_gt_u32 vcc, 8, v{t0}')
    g.e(f'v_add_u32 v{vob}, 8, v{t0}')
    g.e(f'v_subrev_u32 v{t0}, 8, v{t0}')
    g.e(f'v_cndmask_b32 v{t0}, v{t0}, v{vob}, vcc')
    g.e(f'v_cndmask_b32 v{vob}, 0, 1, vcc')
    g.e(f'v_lshlrev_b32 v{vob}, 10, v{vob}')
    g.e(f'v_sub_u32 v{vob}, 2048, v{vob}')
    g.e(f'v_add_u32 v{t1}, 8, v{t1}')
    g.e(f'v_and_b32 v{V_T+9}, 3, v{t0}')
    g.e(f'v_lshl_add_u32 v{vob}, v{V_T+9}, 2, v{vob}')
    g.e(f'v_lshrrev_b32 v{t0}, 2, v{t0}')
    g.e(f'v_lshl_add_u32 v{t0}, v{t0}, 4, v{t1}')
    g.e(f'v_lshl_add_u32 v{vob}, v{t0}, 4, v{vob}')


def proj_out_offset(g, vcol, vo, t0):
    g.e(f'v_lshrrev_b32 v{t0}, 3, v{vcol}')
    g.e(f'v_and_b32 v{vo}, 3, v{t0}')
    g.e(f'v_lshlrev_b32 v{vo}, 2, v{vo}')
    g.e(f'v_lshrrev_b32 v{t0}, 2, v{t0}')
    g.e(f'v_lshlrev_b32 v{t0}, 4, v{t0}')
    g.e(f'v_and_b32 v{V_T+9}, 7, v{vcol}')
    g.e(f'v_add_u32 v{t0}, v{t0}, v{V_T+9}')
    g.e(f'v_lshl_add_u32 v{vo}, v{t0}, 4, v{vo}')
    g.e(f's_and_b32 s{S_T}, s{S_WI}, 1')
    g.e(f's_lshl_b32 s{S_T}, s{S_T}, 7')
    g.e(f's_lshr_b32 s{S_T+1}, s{S_WI}, 1')
    g.e(f's_lshl_b32 s{S_T+1}, s{S_T+1}, 10')
    g.e(f's_add_u32 s{S_T}, s{S_T}, s{S_T+1}')
    g.e(f'v_add_u32 v{vo}, s{S_T}, v{vo}')


def build():
    g = G()
    e = g.e
    e(f's_cmp_ge_u32 s2, 256')
    e('s_cbranch_scc1 L_end')
    e('s_load_dwordx16 s[4:19], s[0:1], 0')
    e('s_load_dwordx8 s[20:27], s[0:1], 64')
    e('s_load_dwordx2 s[28:29], s[0:1], 96')
    e(f'v_and_b32 v{V_LANE}, 63, v0')
    e(f'v_lshrrev_b32 v{V_T}, 6, v0')
    e(f'v_and_b32 v{V_N}, 15, v{V_LANE}')
    e(f'v_lshrrev_b32 v{V_G}, 4, v{V_LANE}')
    e(f'v_readfirstlane_b32 s{S_W}, v{V_T}')
    e(f's_and_b32 s{S_T}, s2, 7')
    e(f's_lshr_b32 s{S_T+1}, s2, 3')
    e(f's_and_b32 s{S_T+2}, s{S_T+1}, 3')
    e(f's_lshl_b32 s{S_H}, s{S_T}, 2')
    e(f's_add_u32 s{S_H}, s{S_H}, s{S_T+2}')
    e(f's_lshr_b32 s{S_R}, s{S_T+1}, 2')
    e(f's_lshr_b32 s{S_B0}, s{S_R}, 2')
    e(f's_and_b32 s{S_QT}, s{S_R}, 3')
    e(f's_lshr_b32 s{S_GRP}, s{S_W}, 2')
    e(f's_and_b32 s{S_WI}, s{S_W}, 3')
    e(f's_lshl_b32 s{S_B}, s{S_GRP}, 1')
    e(f's_add_u32 s{S_B}, s{S_B}, s{S_B0}')
    e(f's_lshl_b32 s{S_BH}, s{S_B}, 5')
    e(f's_add_u32 s{S_BH}, s{S_BH}, s{S_H}')
    e(f's_mul_i32 s{S_KOFF}, s{S_BH}, 3145728')
    e(f's_mul_i32 s{S_T}, s{S_QT}, 786432')
    e(f's_add_u32 s{S_KOFF}, s{S_KOFF}, s{S_T}')
    e(f's_mul_i32 s{S_T}, s{S_WI}, {TB}')
    e(f's_add_u32 s{S_KOFF}, s{S_KOFF}, s{S_T}')
    e(f's_mov_b32 s{S_REM}, {NT}')
    e(f's_mul_i32 s{S_F}, s{S_H}, 3')
    e(f's_add_u32 s{S_F}, s{S_F}, s{S_R}')
    e(f's_sub_u32 s{S_F}, s{S_F}, 5')
    e(f's_mul_i32 s{S_S1}, s{S_F}, 43')
    e(f's_lshr_b32 s{S_S1}, s{S_S1}, 9')
    e(f's_mul_i32 s{S_T}, s{S_S1}, 12')
    e(f's_sub_u32 s{S_C1}, s{S_F}, s{S_T}')
    e(f'v_and_b32 v{V_T}, 3, v{V_N}')
    e(f'v_lshrrev_b32 v{V_T+1}, 2, v{V_N}')
    e(f'v_mul_u32_u24 v{V_KOFF}, 768, v{V_T+1}')
    e(f'v_lshl_add_u32 v{V_KOFF}, v{V_T}, 4, v{V_KOFF}')
    e(f'v_lshl_add_u32 v{V_KOFF}, v{V_G}, 6, v{V_KOFF}')
    e(f'v_mul_u32_u24 v{V_VOFF}, 768, v{V_G}')
    e(f'v_lshl_add_u32 v{V_VOFF}, v{V_N}, 4, v{V_VOFF}')
    e(f'v_and_b32 v{V_T}, 1, v{V_N}')
    e(f'v_cmp_ne_u32 s[{S_M1}:{S_M1+1}], 0, v{V_T}')
    e(f'v_and_b32 v{V_T}, 2, v{V_N}')
    e(f'v_cmp_ne_u32 s[{S_M2}:{S_M2+1}], 0, v{V_T}')
    e(f'v_mov_b32 v{V_T+1}, 0xffff')
    e(f'v_mov_b32 v{V_T+2}, 0xffff0000')
    e(f'v_cndmask_b32 v{V_T+1}, v{V_T+1}, v{V_T+2}, s[{S_M1}:{S_M1+1}]')
    e(f'v_bfe_u32 v{V_T}, v{V_N}, 1, 2')
    for i in range(4):
        e(f'v_cmp_eq_u32 vcc, {i}, v{V_T}')
        e('s_nop 1')
        e(f'v_cndmask_b32 v{V_MASK+i}, 0, v{V_T+1}, vcc')
    e(f's_mov_b32 s{S_C}, {f2u((192 ** -0.5) * 1.4426950408889634):#x}')
    e(f's_mov_b32 s{S_TH}, {f2u(8.0):#x}')
    e('s_waitcnt lgkmcnt(0)')
    srd(g, R_K, S_K, KV_BYTES)
    srd(g, R_V, S_V, KV_BYTES)
    srd(g, R_WS, S_WS, WS_BYTES if not TS else 0x300000)
    srd(g, R_W, S_WQ, WQ_BYTES)
    srd(g, R_X, S_X, 5120)
    srd(g, R_G, S_DBG, 256)
    stamp(g, 0)
    g.c('clear PART slots: thread t -> grp t>>8, dword t&255')
    e(f'v_lshrrev_b32 v{V_T}, 8, v0')
    e(f'v_lshlrev_b32 v{V_T}, 18, v{V_T}')
    e(f'v_and_b32 v{V_T+1}, 255, v0')
    e(f'v_lshl_add_u32 v{V_T}, v{V_T+1}, 2, v{V_T}')
    e(f's_lshl_b32 s{S_T}, s{S_B0}, 5')
    e(f's_add_u32 s{S_T}, s{S_T}, s{S_H}')
    e(f's_lshl_b32 s{S_T}, s{S_T}, 2')
    e(f's_add_u32 s{S_T}, s{S_T}, s{S_QT}')
    e(f's_lshl_b32 s{S_T}, s{S_T}, 10')
    e(f'v_mov_b32 v{V_T+2}, -1')
    e(f'buffer_store_dword v{V_T+2}, v{V_T}, s[{R_WS}:{R_WS+3}], s{S_T} offen sc1')
    e(f'v_lshlrev_b32 v{V_T}, 2, v0')
    L_ffc = g.uid('ffc'); L_cd = g.uid('cd')
    e(f's_cmp_ge_u32 s{S_R}, 5')
    e(f's_cbranch_scc1 {L_ffc}')
    e(f's_mov_b32 s{S_CB}, s{S_R}')
    e(f's_mov_b32 s{S_SRC}, s{S_H}')
    e(f's_mov_b32 s{S_ROLE}, 0')
    e(f's_branch {L_cd}_o')
    g.lab(L_ffc)
    e(f's_lshl_b32 s{S_T}, s{S_C1}, 3')
    e(f's_add_u32 s{S_T}, s{S_T}, s{S_S1}')
    e(f's_lshl_b32 s{S_T}, s{S_T}, 12')
    e(f's_add_u32 s{S_T}, s{S_T}, {WS_F1}')
    e(f'buffer_store_dword v{V_T+2}, v{V_T}, s[{R_WS}:{R_WS+3}], s{S_T} offen sc1')
    e(f'buffer_store_dword v{V_T+2}, v{V_T}, s[{R_WS}:{R_WS+3}], s{S_T} offen offset:2048 sc1')
    e(f's_mov_b32 s{S_CB}, s{S_C1}')
    e(f's_add_u32 s{S_SRC}, s{S_S1}, 32')
    e(f's_mov_b32 s{S_ROLE}, 1')
    e(f's_cmp_ge_u32 s{S_C1}, 5')
    e(f's_cbranch_scc0 {L_cd}_o')
    e(f's_mov_b32 s{S_ROLE}, 2')
    e(f's_branch {L_cd}')
    g.lab(L_cd + '_o')
    e(f's_mul_i32 s{S_T}, s{S_CB}, 40')
    e(f's_add_u32 s{S_T}, s{S_T}, s{S_SRC}')
    e(f's_lshl_b32 s{S_T}, s{S_T}, 11')
    e(f's_add_u32 s{S_T}, s{S_T}, {WS_OUTP}')
    e(f'buffer_store_dword v{V_T+2}, v{V_T}, s[{R_WS}:{R_WS+3}], s{S_T} offen sc1')
    g.lab(L_cd)
    e(f'v_lshlrev_b32 v{V_T+3}, 4, v0')
    e(f'buffer_load_dwordx4 {vr(V_S)}, v{V_T+3}, s[{R_X}:{R_X+3}], 0 offen')
    WQR = V_TILE + 48
    VWQ = V_T + 4
    e(f'v_lshlrev_b32 v{V_T}, 1, v{V_G}')
    e(f'v_mul_u32_u24 v{V_T}, 12288, v{V_T}')
    e(f'v_lshl_add_u32 v{VWQ}, v{V_N}, 4, v{V_T}')
    e(f'v_add_u32 v{VWQ+2}, {12288 + 8*16}, v{VWQ}')
    e(f'v_cmp_gt_u32 vcc, 8, v{V_N}')
    e(f'v_add_u32 v{V_T+1}, 256, v{VWQ}')
    e(f'v_add_u32 v{V_T+2}, {12288 - 128}, v{VWQ}')
    e(f'v_cndmask_b32 v{VWQ+1}, v{V_T+2}, v{V_T+1}, vcc')
    e(f's_mul_i32 s{S_T}, s{S_W}, {80*12288}')
    e(f's_mul_i32 s{S_T+1}, s{S_H}, 384')
    e(f's_add_u32 s{S_T}, s{S_T}, s{S_T+1}')
    for t in range(10):
        for jj in range(3):
            r = WQR + (t * 3 + jj) * 4
            e(f'buffer_load_dwordx4 {vr(r)}, v{VWQ+jj}, s[{R_W}:{R_W+3}], s{S_T} offen')
        if t < 9:
            e(f's_add_u32 s{S_T}, s{S_T}, {8*12288}')
    issue_k(g, 0)
    issue_v(g, 0)
    advance(g)
    e(f'v_lshlrev_b32 v{V_T}, 2, v{V_LANE}')
    e(f'v_add_u32 v{V_T}, {L_MISC}, v{V_T}')
    e(f'v_mov_b32 v{V_T+1}, 0')
    e(f'ds_write_b32 v{V_T}, v{V_T+1}')
    e(f'v_mov_b32 v{V_T}, {L_QZ}')
    e(f'ds_write_b32 v{V_T}, v{V_T+1}')
    e(f'ds_write_b32 v{V_T}, v{V_T+1} offset:4')
    e(f'ds_write_b32 v{V_T}, v{V_T+1} offset:8')
    e(f'ds_write_b32 v{V_T}, v{V_T+1} offset:12')
    e('s_waitcnt vmcnt(42)')
    for i in range(4):
        s = V_S + i
        e(f'v_and_b32 v{V_T}, 0xffff, v{s}')
        e(f'v_lshl_or_b32 v{V_PB+2*i}, v{s}, 16, v{V_T}')
        e(f'v_lshrrev_b32 v{V_T}, 16, v{s}')
        e(f'v_and_b32 v{V_T+1}, 0xffff0000, v{s}')
        e(f'v_or_b32 v{V_PB+2*i+1}, v{V_T+1}, v{V_T}')
    e(f'v_lshlrev_b32 v{V_T}, 5, v0')
    e(f'v_cmp_gt_u32 vcc, 320, v0')
    e(f's_and_saveexec_b64 s[{S_T+2}:{S_T+3}], vcc')
    Lx = g.uid('x')
    e(f's_cbranch_execz {Lx}')
    e(f'ds_write_b128 v{V_T}, {vr(V_PB)} offset:{L_XD}')
    e(f'ds_write_b128 v{V_T}, {vr(V_PB+4)} offset:{L_XD+16}')
    g.lab(Lx)
    e(f's_mov_b64 exec, s[{S_T+2}:{S_T+3}]')
    e('s_waitcnt lgkmcnt(0)')
    e('s_barrier')
    stamp(g, 1)
    Li = g.uid('i')
    e(f's_cmp_lg_u32 s{S_W}, 0')
    e(f's_cbranch_scc1 {Li}')
    e(f'v_mov_b32 v{V_T}, 0')
    e(f'v_mov_b32 v{V_T+1}, 1')
    e('s_mov_b64 exec, 1')
    e(f'buffer_atomic_add v{V_T+1}, v{V_T}, s[{R_G}:{R_G+3}], 0 offen')
    e('s_mov_b64 exec, -1')
    g.lab(Li)
    g.c('x values for B operands: k = 80w + 8t + 2g + (n>>3), batch b0 + 2*beta')
    XA = V_T + 4
    e(f'v_lshrrev_b32 v{XA}, 3, v{V_N}')
    e(f'v_lshl_add_u32 v{XA}, v{V_G}, 1, v{XA}')
    e(f's_mul_i32 s{S_T}, s{S_W}, 80')
    e(f's_mul_i32 s{S_T+1}, s{S_B0}, 640')
    e(f's_add_u32 s{S_T}, s{S_T}, s{S_T+1}')
    e(f'v_add_u32 v{XA}, s{S_T}, v{XA}')
    e(f'v_lshlrev_b32 v{XA}, 2, v{XA}')
    XV = V_S
    for t in range(10):
        for be in range(2):
            e(f'ds_read_b32 v{XV + t*2 + be}, v{XA} offset:{L_XD + t*32 + be*5120}')
    QD = V_O
    BT = V_T + 4
    e('s_waitcnt lgkmcnt(0)')
    for t in range(10):
        e(f's_waitcnt vmcnt({(9-t)*3 + 12})')
        for be in range(2):
            for i in range(4):
                e(f'v_and_b32 v{BT + be*4 + i}, v{XV + t*2 + be}, v{V_MASK+i}')
        e('s_nop 1')
        for be in range(2):
            for jj in range(3):
                a = WQR + (t * 3 + jj) * 4
                dd = QD + (be * 3 + jj) * 4
                cc = '0' if t == 0 else vr(dd)
                e(f'v_mfma_f32_16x16x32_bf16 {vr(dd)}, {vr(a)}, {vr(BT + be*4)}, {cc}')
    e('s_nop 7')
    e('s_nop 3')
    e(f's_mul_i32 s{S_T}, s{S_W}, 6144')
    e(f's_add_u32 s{S_T}, s{S_T}, {L_DQ}')
    e(f'v_lshlrev_b32 v{V_T}, 4, v{V_LANE}')
    e(f'v_add_u32 v{V_T}, s{S_T}, v{V_T}')
    for k in range(6):
        e(f'ds_write_b128 v{V_T}, {vr(QD + k*4)} offset:{k*1024}')
    e('s_waitcnt lgkmcnt(0)')
    e('s_barrier')
    for d in range(1, D):
        issue_k(g, d)
        issue_v(g, d)
        advance(g)
    Lq = g.uid('q')
    e(f's_cmp_eq_u32 s{S_WI}, 3')
    e(f's_cbranch_scc1 {Lq}')
    e(f's_lshl_b32 s{S_T}, s{S_WI}, 6')
    e(f'v_add_u32 v{V_T}, s{S_T}, v{V_LANE}')
    raw_offsets(g, V_T, V_T+1, V_T+2, V_T+3, V_T+4)
    e(f's_mul_i32 s{S_T}, s{S_GRP}, 3072')
    e(f's_add_u32 s{S_T}, s{S_T}, {L_DQ}')
    e(f'v_add_u32 v{V_T+1}, s{S_T}, v{V_T+1}')
    e(f'v_add_u32 v{V_T+2}, s{S_T}, v{V_T+2}')
    for wv in range(8):
        e(f'ds_read_b32 v{V_S + wv*2}, v{V_T+1} offset:{wv*6144}')
        e(f'ds_read_b32 v{V_S + wv*2 + 1}, v{V_T+2} offset:{wv*6144}')
    e('s_waitcnt lgkmcnt(0)')
    for k in range(1, 16):
        e(f'v_add_f32 v{V_S}, v{V_S}, v{V_S+k}')
    e(f'v_cvt_pk_bf16_f32 v{V_S}, v{V_S}, v{V_S}')
    e(f's_mul_i32 s{S_T}, s{S_GRP}, 384')
    e(f'v_lshlrev_b32 v{V_T}, 1, v{V_T}')
    e(f'v_add_u32 v{V_T}, s{S_T}, v{V_T}')
    e(f'ds_write_b16 v{V_T}, v{V_S} offset:{L_QS}')
    g.lab(Lq)
    e('s_waitcnt lgkmcnt(0)')
    e('s_barrier')
    stamp(g, 2)
    e(f'v_and_b32 v{V_T}, 3, v{V_N}')
    e(f'v_lshl_add_u32 v{V_T}, v{V_G}, 2, v{V_T}')
    e(f'v_lshlrev_b32 v{V_T}, 4, v{V_T}')
    e(f's_mul_i32 s{S_T}, s{S_GRP}, 384')
    e(f's_add_u32 s{S_T}, s{S_T}, {L_QS}')
    e(f'v_add_u32 v{V_T}, s{S_T}, v{V_T}')
    e(f'v_mov_b32 v{V_T+1}, {L_QZ}')
    e(f'v_cmp_gt_u32 s[{S_T+2}:{S_T+3}], 8, v{V_N}')
    e(f'v_cmp_gt_u32 s[{S_T+4}:{S_T+5}], 2, v{V_G}')
    e('s_nop 1')
    e(f'v_cndmask_b32 v{V_T+2}, v{V_T+1}, v{V_T}, s[{S_T+2}:{S_T+3}]')
    e(f'v_add_u32 v{V_T+3}, 128, v{V_T}')
    e(f'v_cndmask_b32 v{V_T+4}, v{V_T+3}, v{V_T+1}, s[{S_T+2}:{S_T+3}]')
    e(f'v_add_u32 v{V_T+3}, 256, v{V_T}')
    e(f'v_cndmask_b32 v{V_T+3}, v{V_T+1}, v{V_T+3}, s[{S_T+4}:{S_T+5}]')
    e(f'v_subrev_u32 v{V_T+5}, 128, v{V_T}')
    e(f'v_cndmask_b32 v{V_T+5}, v{V_T+5}, v{V_T+1}, s[{S_T+4}:{S_T+5}]')
    e(f'v_cndmask_b32 v{V_T+3}, v{V_T+5}, v{V_T+3}, s[{S_T+2}:{S_T+3}]')
    e(f'ds_read_b128 {vr(V_QB)}, v{V_T+2}')
    e(f'ds_read_b128 {vr(V_QB+4)}, v{V_T+3}')
    e(f'ds_read_b128 {vr(V_QB+8)}, v{V_T+4}')
    for i in range(12):
        e(f'v_mov_b32 v{V_O+i}, 0')
    e(f'v_mov_b32 v{V_L}, 0')
    e(f'v_mov_b32 v{V_M}, 0xff800000')
    e(f's_mov_b32 s{S_LOOP}, {NT // D}')
    e('s_waitcnt lgkmcnt(0)')
    g.lab('L_main')
    NW = 6 + 12 * (D - 1)
    X0 = V_T; X1 = V_T + 1; Y0 = V_T + 2; Y1 = V_T + 3; E0 = V_T + 4; E1 = V_T + 5; MX = V_T + 6
    for d in range(D):
        Lr = f'L_resc_{d}'; Lb = f'L_back_{d}'
        e(f's_waitcnt vmcnt({NW})')
        for jj in range(3):
            for u in range(2):
                s = V_S + u * 4
                cc = '0' if jj == 0 else vr(s)
                e(f'v_mfma_f32_16x16x32_bf16 {vr(s)}, {vr(tile_reg(d,0,u,jj))}, {vr(V_QB+jj*4)}, {cc}')
        issue_k(g, d)
        e('s_nop 1')
        e(f'v_cndmask_b32 v{X0}, v{V_S+0}, v{V_S+1}, s[{S_M1}:{S_M1+1}]')
        e(f'v_cndmask_b32 v{Y0}, v{V_S+2}, v{V_S+3}, s[{S_M1}:{S_M1+1}]')
        e(f'v_cndmask_b32 v{X1}, v{V_S+4}, v{V_S+5}, s[{S_M1}:{S_M1+1}]')
        e(f'v_cndmask_b32 v{Y1}, v{V_S+6}, v{V_S+7}, s[{S_M1}:{S_M1+1}]')
        e(f'v_cndmask_b32 v{X0}, v{X0}, v{Y0}, s[{S_M2}:{S_M2+1}]')
        e(f'v_cndmask_b32 v{X1}, v{X1}, v{Y1}, s[{S_M2}:{S_M2+1}]')
        e('s_nop 0')
        e(f'v_add_f32_dpp v{X0}, v{X0}, v{X0} quad_perm:[1,0,3,2] row_mask:0xf bank_mask:0xf')
        e(f'v_add_f32_dpp v{X1}, v{X1}, v{X1} quad_perm:[1,0,3,2] row_mask:0xf bank_mask:0xf')
        e('s_nop 0')
        e(f'v_add_f32_dpp v{X0}, v{X0}, v{X0} quad_perm:[2,3,0,1] row_mask:0xf bank_mask:0xf')
        e(f'v_add_f32_dpp v{X1}, v{X1}, v{X1} quad_perm:[2,3,0,1] row_mask:0xf bank_mask:0xf')
        e(f'v_fma_f32 v{E0}, v{X0}, s{S_C}, -v{V_M}')
        e(f'v_fma_f32 v{E1}, v{X1}, s{S_C}, -v{V_M}')
        e(f'v_max_f32 v{MX}, v{E0}, v{E1}')
        e(f'v_cmp_lt_f32 vcc, s{S_TH}, v{MX}')
        e(f's_cbranch_vccnz {Lr}')
        g.lab(Lb)
        e(f'v_exp_f32 v{E0}, v{E0}')
        e(f'v_exp_f32 v{E1}, v{E1}')
        e('s_nop 0')
        e(f'v_cvt_pk_bf16_f32 v{X0}, v{E0}, v{E0}')
        e(f'v_cvt_pk_bf16_f32 v{X1}, v{E1}, v{E1}')
        e(f'v_add_f32 v{V_L}, v{V_L}, v{E0}')
        e(f'v_add_f32 v{V_L}, v{V_L}, v{E1}')
        for i in range(4):
            e(f'v_and_b32 v{V_PB+i}, v{X0}, v{V_MASK+i}')
        for i in range(4):
            e(f'v_and_b32 v{V_PB+4+i}, v{X1}, v{V_MASK+i}')
        e(f's_waitcnt vmcnt({NW})')
        for u in range(2):
            for jj in range(3):
                o = V_O + jj * 4
                e(f'v_mfma_f32_16x16x32_bf16 {vr(o)}, {vr(tile_reg(d,1,u,jj))}, {vr(V_PB+u*4)}, {vr(o)}')
        issue_v(g, d)
        advance(g)
    e(f's_sub_u32 s{S_LOOP}, s{S_LOOP}, 1')
    e(f's_cmp_lg_u32 s{S_LOOP}, 0')
    e('s_cbranch_scc1 L_main')
    e('s_branch L_fin')
    for d in range(D):
        Lr = f'L_resc_{d}'; Lb = f'L_back_{d}'
        g.lab(Lr)
        e(f'v_mul_f32 v{X0}, s{S_C}, v{X0}')
        e(f'v_mul_f32 v{X1}, s{S_C}, v{X1}')
        e(f'v_max_f32 v{MX}, v{X0}, v{X1}')
        e('s_nop 1')
        e(f'v_max_f32_dpp v{MX}, v{MX}, v{MX} row_ror:8 row_mask:0xf bank_mask:0xf')
        e('s_nop 1')
        e(f'v_readlane_b32 s{S_T}, v{MX}, 0')
        e(f'v_readlane_b32 s{S_T+1}, v{MX}, 16')
        e(f'v_readlane_b32 s{S_T+2}, v{MX}, 32')
        e(f'v_readlane_b32 s{S_T+3}, v{MX}, 48')
        e('s_nop 3')
        e(f'v_max_f32 v{MX}, s{S_T}, v{V_M}')
        e(f'v_max_f32 v{MX}, s{S_T+1}, v{MX}')
        e(f'v_max_f32 v{MX}, s{S_T+2}, v{MX}')
        e(f'v_max_f32 v{MX}, s{S_T+3}, v{MX}')
        e(f'v_sub_f32 v{Y0}, v{V_M}, v{MX}')
        e(f'v_exp_f32 v{Y0}, v{Y0}')
        e(f'v_mov_b32 v{V_M}, v{MX}')
        e('s_nop 7')
        for i in range(12):
            e(f'v_mul_f32 v{V_O+i}, v{V_O+i}, v{Y0}')
        e(f'v_mul_f32 v{V_L}, v{V_L}, v{Y0}')
        e(f'v_sub_f32 v{E0}, v{X0}, v{V_M}')
        e(f'v_sub_f32 v{E1}, v{X1}, v{V_M}')
        e(f's_branch {Lb}')
    g.lab('L_fin')
    stamp(g, 3)
    e('s_nop 7')
    e('s_nop 3')
    e(f'v_add_f32_dpp v{V_L}, v{V_L}, v{V_L} row_ror:8 row_mask:0xf bank_mask:0xf')
    e('s_nop 1')
    e(f'v_readlane_b32 s{S_T}, v{V_L}, 0')
    e(f'v_readlane_b32 s{S_T+1}, v{V_L}, 16')
    e(f'v_readlane_b32 s{S_T+2}, v{V_L}, 32')
    e(f'v_readlane_b32 s{S_T+3}, v{V_L}, 48')
    e('s_nop 3')
    e(f'v_mov_b32 v{V_T+1}, s{S_T}')
    e(f'v_add_f32 v{V_T+1}, s{S_T+1}, v{V_T+1}')
    e(f'v_add_f32 v{V_T+1}, s{S_T+2}, v{V_T+1}')
    e(f'v_add_f32 v{V_T+1}, s{S_T+3}, v{V_T+1}')
    e(f'v_mov_b32 v{V_T}, v{V_M}')
    e(f's_mul_i32 s{S_T}, s{S_W}, 3328')
    e(f'v_lshlrev_b32 v{V_T+2}, 4, v{V_LANE}')
    e(f'v_add_u32 v{V_T+2}, s{S_T}, v{V_T+2}')
    for jj in range(3):
        e(f'ds_write_b128 v{V_T+2}, {vr(V_O+jj*4)} offset:{L_DA + jj*1024}')
    e(f'v_mov_b32 v{V_T+3}, s{S_T}')
    e(f'ds_write_b64 v{V_T+3}, v[{V_T}:{V_T+1}] offset:{L_DA + 3072}')
    Lg1 = g.uid('g1'); Lg2 = g.uid('g2')
    e(f's_cmp_eq_u32 s{S_GRP}, 0')
    e(f's_cbranch_scc0 {Lg1}')
    subbarrier(g, C_MERGE0)
    e(f's_branch {Lg2}')
    g.lab(Lg1)
    subbarrier(g, C_MERGE1)
    g.lab(Lg2)
    e(f's_mul_i32 s{S_T}, s{S_WI}, 48')
    e(f'v_add_u32 v{V_T}, s{S_T}, v{V_LANE}')
    e(f'v_min_u32 v{V_T}, 191, v{V_T}')
    raw_offsets(g, V_T, V_T+1, V_T+2, V_T+3, V_T+4)
    e(f's_mul_i32 s{S_T}, s{S_GRP}, {4*3328}')
    e(f'v_add_u32 v{V_T+1}, s{S_T}, v{V_T+1}')
    e(f'v_add_u32 v{V_T+2}, s{S_T}, v{V_T+2}')
    e(f'v_mov_b32 v{V_T+3}, s{S_T}')
    for wv in range(4):
        e(f'ds_read_b32 v{V_S+wv*2}, v{V_T+1} offset:{L_DA + wv*3328}')
        e(f'ds_read_b32 v{V_S+wv*2+1}, v{V_T+2} offset:{L_DA + wv*3328}')
        e(f'ds_read_b64 v[{V_PB+wv*2}:{V_PB+wv*2+1}], v{V_T+3} offset:{L_DA + wv*3328 + 3072}')
    e('s_waitcnt lgkmcnt(0)')
    e(f'v_max_f32 v{V_T+4}, v{V_PB}, v{V_PB+2}')
    e(f'v_max3_f32 v{V_T+4}, v{V_T+4}, v{V_PB+4}, v{V_PB+6}')
    for wv in range(4):
        e(f'v_sub_f32 v{V_PB+wv*2}, v{V_PB+wv*2}, v{V_T+4}')
        e(f'v_exp_f32 v{V_PB+wv*2}, v{V_PB+wv*2}')
        e(f'v_add_f32 v{V_S+wv*2}, v{V_S+wv*2}, v{V_S+wv*2+1}')
    e('s_nop 0')
    e(f'v_mul_f32 v{V_T+5}, v{V_S}, v{V_PB}')
    e(f'v_mul_f32 v{V_T+6}, v{V_PB+1}, v{V_PB}')
    for wv in range(1, 4):
        e(f'v_fmac_f32 v{V_T+5}, v{V_S+wv*2}, v{V_PB+wv*2}')
        e(f'v_fmac_f32 v{V_T+6}, v{V_PB+wv*2+1}, v{V_PB+wv*2}')
    e(f'v_min_u32 v{V_T+5}, -2, v{V_T+5}')
    e(f'v_min_u32 v{V_T+6}, -2, v{V_T+6}')
    e(f'v_min_u32 v{V_T+4}, -2, v{V_T+4}')
    e(f's_lshl_b32 s{S_T}, s{S_BH}, 2')
    e(f's_add_u32 s{S_T}, s{S_T}, s{S_QT}')
    e(f's_lshl_b32 s{S_T}, s{S_T}, 10')
    e(f'v_lshlrev_b32 v{V_T}, 2, v{V_T}')
    e(f'v_cmp_eq_u32 vcc, 48, v{V_LANE}')
    e(f'v_mov_b32 v{V_T+7}, 768')
    e('s_nop 0')
    e(f'v_cndmask_b32 v{V_T}, v{V_T}, v{V_T+7}, vcc')
    e(f'v_cndmask_b32 v{V_T+5}, v{V_T+5}, v{V_T+4}, vcc')
    e(f'v_cmp_eq_u32 vcc, 49, v{V_LANE}')
    e(f'v_mov_b32 v{V_T+7}, 772')
    e('s_nop 0')
    e(f'v_cndmask_b32 v{V_T}, v{V_T}, v{V_T+7}, vcc')
    e(f'v_cndmask_b32 v{V_T+5}, v{V_T+5}, v{V_T+6}, vcc')
    e(f'v_cmp_gt_u32 vcc, 50, v{V_LANE}')
    e(f's_and_saveexec_b64 s[{S_T+2}:{S_T+3}], vcc')
    e(f'buffer_store_dword v{V_T+5}, v{V_T}, s[{R_WS}:{R_WS+3}], s{S_T} offen sc1')
    e(f's_mov_b64 exec, s[{S_T+2}:{S_T+3}]')
    stamp(g, 4)
    Lc = g.uid('cont')
    e(f's_cmp_eq_u32 s{S_GRP}, 0')
    e(f's_cbranch_scc1 {Lc}')
    e(f'v_mov_b32 v{V_T+10}, {L_MISC + C_R1DONE}')
    e(f'v_mov_b32 v{V_T+11}, 1')
    e('s_mov_b64 exec, 1')
    e(f'ds_add_u32 v{V_T+10}, v{V_T+11}')
    e('s_mov_b64 exec, -1')
    e('s_waitcnt lgkmcnt(0)')
    e('s_endpgm')
    g.lab(Lc)
    g.c('gate for batch wi')
    srd(g, R_W, S_GW, 1280)
    e(f'v_lshlrev_b32 v{V_T}, 2, v{V_LANE}')
    for i in range(5):
        e(f'buffer_load_dword v{V_S+i}, v{V_T}, s[{R_W}:{R_W+3}], 0 offen offset:{i*256}')
    e(f's_mul_i32 s{S_T}, s{S_WI}, 2560')
    e(f'v_lshlrev_b32 v{V_T+1}, 3, v{V_LANE}')
    e(f'v_add_u32 v{V_T+1}, s{S_T}, v{V_T+1}')
    for i in range(5):
        e(f'ds_read_b64 v[{V_PB+2*i if i<4 else V_T+2}:{(V_PB+2*i if i<4 else V_T+2)+1}], v{V_T+1} offset:{L_XD + i*512}')
    e('s_waitcnt vmcnt(0) lgkmcnt(0)')
    e(f'v_mov_b32 v{V_T+4}, 0')
    for i in range(5):
        xr = V_PB + 2*i if i < 4 else V_T + 2
        e(f'v_lshlrev_b32 v{V_T+5}, 16, v{V_S+i}')
        e(f'v_and_b32 v{V_T+6}, 0xffff0000, v{V_S+i}')
        e(f'v_and_b32 v{V_T+7}, 0xffff0000, v{xr}')
        e(f'v_and_b32 v{V_T+8}, 0xffff0000, v{xr+1}')
        e(f'v_fmac_f32 v{V_T+4}, v{V_T+5}, v{V_T+7}')
        e(f'v_fmac_f32 v{V_T+4}, v{V_T+6}, v{V_T+8}')
    wave_sum(g, V_T+4, V_T+5, S_T)
    V_GATE = V_L
    e(f'v_mul_f32 v{V_T+4}, {f2u(-1.4426950408889634):#x}, v{V_T+4}')
    e(f'v_exp_f32 v{V_T+4}, v{V_T+4}')
    e('s_nop 0')
    e(f'v_add_f32 v{V_T+4}, 1.0, v{V_T+4}')
    e(f'v_rcp_f32 v{V_GATE}, v{V_T+4}')
    e('s_nop 0')
    Lw = g.uid('iw'); Lwd = g.uid('iwd')
    e(f'v_mov_b32 v{V_T}, 0')
    spin_init(g)
    g.lab(Lw)
    e(f'buffer_load_dword v{V_T+1}, v{V_T}, s[{R_G}:{R_G+3}], 0 offen sc1')
    e('s_waitcnt vmcnt(0)')
    e(f'v_readfirstlane_b32 s{S_T}, v{V_T+1}')
    e('s_nop 3')
    e(f's_cmp_ge_u32 s{S_T}, 256')
    e(f's_cbranch_scc1 {Lwd}')
    spin_guard(g, Lwd)
    e('s_sleep 8')
    e(f's_branch {Lw}')
    g.lab(Lwd)
    TILE = V_TILE
    e(f's_cmp_eq_u32 s{S_ROLE}, 0')
    e('s_cbranch_scc0 L_ffn')
    srd(g, R_W, S_WO, WO_BYTES)
    e(f'v_mul_u32_u24 v{V_T}, 1280, v{V_G}')
    e(f'v_lshl_add_u32 v{V_T}, v{V_N}, 4, v{V_T}')
    e(f's_mul_i32 s{S_T}, s{S_H}, 192')
    e(f's_mul_i32 s{S_T+1}, s{S_WI}, 48')
    e(f's_add_u32 s{S_T}, s{S_T}, s{S_T+1}')
    e(f's_mul_i32 s{S_T}, s{S_T}, 1280')
    e(f's_lshl_b32 s{S_T+1}, s{S_CB}, 8')
    e(f's_add_u32 s{S_T}, s{S_T}, s{S_T+1}')
    for t in range(12):
        e(f'buffer_load_dwordx4 {vr(TILE+t*4)}, v{V_T}, s[{R_W}:{R_W+3}], s{S_T} offen')
        if t < 11:
            e(f's_add_u32 s{S_T}, s{S_T}, {4*1280}')
    Lr1 = g.uid('r1'); Lr1d = g.uid('r1d')
    e(f'v_mov_b32 v{V_T+10}, {L_MISC + C_R1DONE}')
    spin_init(g)
    g.lab(Lr1)
    e(f'ds_read_b32 v{V_T+11}, v{V_T+10}')
    e('s_waitcnt lgkmcnt(0)')
    e(f'v_readfirstlane_b32 s{S_T}, v{V_T+11}')
    e('s_nop 3')
    e(f's_cmp_ge_u32 s{S_T}, 4')
    e(f's_cbranch_scc1 {Lr1d}')
    spin_guard(g, Lr1d)
    e('s_sleep 2')
    e(f's_branch {Lr1}')
    g.lab(Lr1d)
    stamp(g, 5)
    e(f's_lshl_b32 s{S_T}, s{S_WI}, 5')
    e(f's_add_u32 s{S_T}, s{S_T}, s{S_H}')
    e(f's_lshl_b32 s{S_T}, s{S_T}, 12')
    e(f'v_lshlrev_b32 v{V_T}, 2, v{V_LANE}')
    e(f'v_mov_b32 v{V_T+1}, 768')
    PO = V_TILE + 48
    PM = V_TILE + 60
    Lp = g.uid('pp'); Lpd = g.uid('ppd')
    spin_init(g)
    g.lab(Lp)
    for qt in range(4):
        e(f'buffer_load_dwordx2 v[{PM+qt*2}:{PM+qt*2+1}], v{V_T+1}, s[{R_WS}:{R_WS+3}], s{S_T} offen offset:{qt*1024} sc1')
    for qt in range(4):
        for j in range(3):
            e(f'buffer_load_dword v{PO+qt*3+j}, v{V_T}, s[{R_WS}:{R_WS+3}], s{S_T} offen offset:{qt*1024 + j*256} sc1')
    e('s_waitcnt vmcnt(0)')
    e(f'v_max3_u32 v{V_T+2}, v{PO}, v{PO+1}, v{PO+2}')
    for k in range(3, 19, 2):
        e(f'v_max3_u32 v{V_T+2}, v{V_T+2}, v{PO+k}, v{PO+k+1}')
    e(f'v_max_u32 v{V_T+2}, v{V_T+2}, v{PO+19}')
    e(f'v_cmp_eq_u32 vcc, -1, v{V_T+2}')
    e(f's_cbranch_vccz {Lpd}')
    spin_guard(g, Lpd)
    e('s_sleep 2')
    e(f's_branch {Lp}')
    g.lab(Lpd)
    stamp(g, 6)
    e(f'v_max_f32 v{V_T+2}, v{PM}, v{PM+2}')
    e(f'v_max3_f32 v{V_T+2}, v{V_T+2}, v{PM+4}, v{PM+6}')
    for qt in range(4):
        e(f'v_sub_f32 v{PM+qt*2}, v{PM+qt*2}, v{V_T+2}')
        e(f'v_exp_f32 v{PM+qt*2}, v{PM+qt*2}')
    e('s_nop 0')
    e(f'v_mul_f32 v{V_T+3}, v{PM+1}, v{PM}')
    for qt in range(1, 4):
        e(f'v_fmac_f32 v{V_T+3}, v{PM+qt*2+1}, v{PM+qt*2}')
    e(f'v_rcp_f32 v{V_T+3}, v{V_T+3}')
    for j in range(3):
        e(f'v_mul_f32 v{V_T+4+j}, v{PO+j}, v{PM}')
        for qt in range(1, 4):
            e(f'v_fmac_f32 v{V_T+4+j}, v{PO+qt*3+j}, v{PM+qt*2}')
    for j in range(3):
        e(f'v_mul_f32 v{V_T+4+j}, v{V_T+4+j}, v{V_T+3}')
    e('s_branch L_od')
    g.lab('L_ffn')
    e(f'v_mul_u32_u24 v{V_T}, 3072, v{V_G}')
    e(f'v_lshl_add_u32 v{V_T}, v{V_N}, 4, v{V_T}')
    e(f's_mul_i32 s{S_T+2}, s{S_S1}, 80')
    e(f's_mul_i32 s{S_T+1}, s{S_WI}, 20')
    e(f's_add_u32 s{S_T+2}, s{S_T+2}, s{S_T+1}')
    e(f's_mul_i32 s{S_T}, s{S_T+2}, 3072')
    e(f's_lshl_b32 s{S_T+1}, s{S_C1}, 8')
    e(f's_add_u32 s{S_T}, s{S_T}, s{S_T+1}')
    FA = V_TILE + 48
    srd(g, R_W, S_WGATE, WG_BYTES)
    for t in range(5):
        e(f'buffer_load_dwordx4 {vr(FA+t*4)}, v{V_T}, s[{R_W}:{R_W+3}], s{S_T} offen')
        e(f's_add_u32 s{S_T}, s{S_T}, {4*3072}')
    e(f's_sub_u32 s{S_T}, s{S_T}, {20*3072}')
    srd(g, R_X, S_WUP, WG_BYTES)
    for t in range(5):
        e(f'buffer_load_dwordx4 {vr(FA+20+t*4)}, v{V_T}, s[{R_X}:{R_X+3}], s{S_T} offen')
        e(f's_add_u32 s{S_T}, s{S_T}, {4*3072}')
    Lnd = g.uid('nd')
    e(f's_cmp_eq_u32 s{S_ROLE}, 1')
    e(f's_cbranch_scc0 {Lnd}')
    srd(g, R_W, S_WDOWN, WD_BYTES)
    e(f'v_mul_u32_u24 v{V_T+1}, 1280, v{V_G}')
    e(f'v_lshl_add_u32 v{V_T+1}, v{V_N}, 4, v{V_T+1}')
    e(f's_mul_i32 s{S_T}, s{S_S1}, 192')
    e(f's_mul_i32 s{S_T+1}, s{S_WI}, 48')
    e(f's_add_u32 s{S_T}, s{S_T}, s{S_T+1}')
    e(f's_mul_i32 s{S_T}, s{S_T}, 1280')
    e(f's_lshl_b32 s{S_T+1}, s{S_CB}, 8')
    e(f's_add_u32 s{S_T}, s{S_T}, s{S_T+1}')
    for t in range(12):
        e(f'buffer_load_dwordx4 {vr(TILE+t*4)}, v{V_T+1}, s[{R_W}:{R_W+3}], s{S_T} offen')
        if t < 11:
            e(f's_add_u32 s{S_T}, s{S_T}, {4*1280}')
    g.lab(Lnd)
    e(f'v_lshrrev_b32 v{V_T}, 3, v{V_N}')
    e(f'v_mul_u32_u24 v{V_T}, 640, v{V_T}')
    e(f'v_add_u32 v{V_T}, v{V_T}, v{V_G}')
    e(f'v_add_u32 v{V_T}, s{S_T+2}, v{V_T}')
    e(f'v_lshlrev_b32 v{V_T}, 2, v{V_T}')
    for t in range(5):
        for P in range(2):
            e(f'ds_read_b32 v{V_TILE + 96 + t*2 + P}, v{V_T} offset:{L_XD + t*16 + P*5120}')
    e('s_waitcnt vmcnt(0) lgkmcnt(0)')
    FD = V_O
    for t in range(5):
        for P in range(2):
            for i in range(4):
                e(f'v_and_b32 v{V_PB + P*4 + i}, v{V_TILE + 96 + t*2 + P}, v{V_MASK+i}')
        e('s_nop 1')
        for mat in range(2):
            for P in range(2):
                dd = FD + (mat*2+P)*4
                cc = '0' if t == 0 else vr(dd)
                e(f'v_mfma_f32_16x16x32_bf16 {vr(dd)}, {vr(FA + mat*20 + t*4)}, {vr(V_PB+P*4)}, {cc}')
    e('s_nop 7')
    e('s_nop 3')
    e(f's_lshl_b32 s{S_T}, s{S_WI}, 12')
    e(f'v_lshlrev_b32 v{V_T}, 4, v{V_LANE}')
    e(f'v_add_u32 v{V_T}, s{S_T}, v{V_T}')
    for k in range(4):
        e(f'ds_write_b128 v{V_T}, {vr(FD+k*4)} offset:{L_DP + k*1024}')
    subbarrier(g, C_SB3)
    for jj in range(2):
        e(f'v_add_u32 v{V_T+1}, {64*jj}, v{V_LANE}')
        proj_out_offset(g, V_T+1, V_T+2+jj, V_T+4)
    for mat in range(2):
        for jj in range(2):
            for wv in range(4):
                e(f'ds_read_b32 v{V_S + (mat*2+jj)*4 + wv}, v{V_T+2+jj} offset:{L_DP + wv*4096 + mat*2048}')
    e('s_waitcnt lgkmcnt(0)')
    e(f's_lshl_b32 s{S_T}, s{S_C1}, 3')
    e(f's_add_u32 s{S_T}, s{S_T}, s{S_S1}')
    e(f's_lshl_b32 s{S_T}, s{S_T}, 12')
    e(f's_lshl_b32 s{S_T+1}, s{S_WI}, 9')
    e(f's_add_u32 s{S_T}, s{S_T}, s{S_T+1}')
    e(f's_add_u32 s{S_T}, s{S_T}, {WS_F1}')
    e(f'v_lshlrev_b32 v{V_T+1}, 2, v{V_LANE}')
    for mat in range(2):
        for jj in range(2):
            b = V_S + (mat*2+jj)*4
            e(f'v_add_f32 v{b}, v{b}, v{b+1}')
            e(f'v_add_f32 v{b+2}, v{b+2}, v{b+3}')
            e(f'v_add_f32 v{b}, v{b}, v{b+2}')
            e(f'v_min_u32 v{b}, -2, v{b}')
            e(f'buffer_store_dword v{b}, v{V_T+1}, s[{R_WS}:{R_WS+3}], s{S_T} offen offset:{mat*2048 + jj*256} sc1')
    e(f's_cmp_eq_u32 s{S_ROLE}, 1')
    e('s_cbranch_scc0 L_end')
    HG = V_TILE + 48
    Lh = g.uid('hp'); Lhd = g.uid('hpd')
    e(f'v_lshlrev_b32 v{V_T}, 2, v{V_LANE}')
    spin_init(g)
    g.lab(Lh)
    for jj in range(3):
        e(f's_mul_i32 s{S_T}, s{S_S1}, 192')
        e(f's_add_u32 s{S_T}, s{S_T}, {64*jj}')
        e(f's_lshr_b32 s{S_T+1}, s{S_T}, 7')
        e(f's_and_b32 s{S_T}, s{S_T}, 127')
        e(f's_lshl_b32 s{S_T}, s{S_T}, 2')
        e(f's_lshl_b32 s{S_T+1}, s{S_T+1}, 15')
        e(f's_add_u32 s{S_T}, s{S_T}, s{S_T+1}')
        e(f's_lshl_b32 s{S_T+1}, s{S_WI}, 9')
        e(f's_add_u32 s{S_T}, s{S_T}, s{S_T+1}')
        e(f's_add_u32 s{S_T}, s{S_T}, {WS_F1}')
        for s in range(8):
            for mat in range(2):
                e(f'buffer_load_dword v{HG + (jj*2+mat)*8 + s}, v{V_T}, s[{R_WS}:{R_WS+3}], s{S_T} offen offset:{mat*2048} sc1')
            if s < 7:
                e(f's_add_u32 s{S_T}, s{S_T}, 4096')
    e('s_waitcnt vmcnt(0)')
    e(f'v_max3_u32 v{V_T+2}, v{HG}, v{HG+1}, v{HG+2}')
    for k in range(3, 47, 2):
        e(f'v_max3_u32 v{V_T+2}, v{V_T+2}, v{HG+k}, v{HG+k+1}')
    e(f'v_max_u32 v{V_T+2}, v{V_T+2}, v{HG+47}')
    e(f'v_cmp_eq_u32 vcc, -1, v{V_T+2}')
    e(f's_cbranch_vccz {Lhd}')
    spin_guard(g, Lhd)
    e('s_sleep 16')
    e(f's_branch {Lh}')
    g.lab(Lhd)
    for jj in range(3):
        for mat in range(2):
            b = HG + (jj*2+mat)*8
            for s in range(1, 8):
                e(f'v_add_f32 v{b}, v{b}, v{b+s}')
        gg = HG + (jj*2)*8; uu = HG + (jj*2+1)*8
        e(f'v_mul_f32 v{V_T+2}, v{gg}, v{gg}')
        e(f'v_mul_f32 v{V_T+2}, {f2u(0.044715):#x}, v{V_T+2}')
        e(f'v_add_f32 v{V_T+2}, 1.0, v{V_T+2}')
        e(f'v_mul_f32 v{V_T+2}, v{V_T+2}, v{gg}')
        e(f'v_mul_f32 v{V_T+2}, {f2u(-2.0*0.7978845608028654*1.4426950408889634):#x}, v{V_T+2}')
        e(f'v_exp_f32 v{V_T+2}, v{V_T+2}')
        e('s_nop 0')
        e(f'v_add_f32 v{V_T+2}, 1.0, v{V_T+2}')
        e(f'v_rcp_f32 v{V_T+2}, v{V_T+2}')
        e('s_nop 0')
        e(f'v_mul_f32 v{V_T+2}, v{V_T+2}, v{gg}')
        e(f'v_mul_f32 v{V_T+4+jj}, v{V_T+2}, v{uu}')
    e(f'v_sub_f32 v{V_GATE}, 1.0, v{V_GATE}')
    g.lab('L_od')
    e(f's_mul_i32 s{S_T}, s{S_WI}, 768')
    e(f'v_lshlrev_b32 v{V_T}, 2, v{V_LANE}')
    e(f'v_add_u32 v{V_T}, s{S_T}, v{V_T}')
    for j in range(3):
        e(f'v_cvt_pk_bf16_f32 v{V_T+4+j}, v{V_T+4+j}, v{V_T+4+j}')
        e(f'ds_write_b32 v{V_T}, v{V_T+4+j} offset:{L_OD + j*256}')
    subbarrier(g, C_SB1)
    e(f'v_lshrrev_b32 v{V_T}, 3, v{V_N}')
    e(f'v_mul_u32_u24 v{V_T}, 192, v{V_T}')
    e(f'v_add_u32 v{V_T}, v{V_T}, v{V_G}')
    e(f's_mul_i32 s{S_T}, s{S_WI}, 48')
    e(f'v_add_u32 v{V_T}, s{S_T}, v{V_T}')
    e(f'v_lshlrev_b32 v{V_T}, 2, v{V_T}')
    BV = V_TILE + 96
    for t in range(12):
        for P in range(2):
            e(f'ds_read_b32 v{BV + t*2 + P}, v{V_T} offset:{L_OD + t*16 + P*1536}')
    e('s_waitcnt vmcnt(0) lgkmcnt(0)')
    PD = V_O
    for t in range(12):
        for P in range(2):
            for i in range(4):
                e(f'v_and_b32 v{V_QB + (t&1)*8 + P*4 + i}, v{BV + t*2 + P}, v{V_MASK+i}')
        e('s_nop 1')
        for P in range(2):
            dd = PD + P*4
            cc = '0' if t == 0 else vr(dd)
            e(f'v_mfma_f32_16x16x32_bf16 {vr(dd)}, {vr(TILE + t*4)}, {vr(V_QB + (t&1)*8 + P*4)}, {cc}')
    e('s_nop 7')
    e('s_nop 3')
    e(f's_lshl_b32 s{S_T}, s{S_WI}, 11')
    e(f'v_lshlrev_b32 v{V_T}, 4, v{V_LANE}')
    e(f'v_add_u32 v{V_T}, s{S_T}, v{V_T}')
    for P in range(2):
        e(f'ds_write_b128 v{V_T}, {vr(PD+P*4)} offset:{L_DP2 + P*1024}')
    subbarrier(g, C_SB2)
    for jj in range(2):
        e(f'v_add_u32 v{V_T+1}, {64*jj}, v{V_LANE}')
        proj_out_offset(g, V_T+1, V_T+2+jj, V_T+4)
    for jj in range(2):
        for wv in range(4):
            e(f'ds_read_b32 v{V_S + jj*4 + wv}, v{V_T+2+jj} offset:{L_DP2 + wv*2048}')
    e('s_waitcnt lgkmcnt(0)')
    e(f's_mul_i32 s{S_T}, s{S_CB}, 40')
    e(f's_add_u32 s{S_T}, s{S_T}, s{S_SRC}')
    e(f's_lshl_b32 s{S_T}, s{S_T}, 11')
    e(f's_lshl_b32 s{S_T+1}, s{S_WI}, 9')
    e(f's_add_u32 s{S_T}, s{S_T}, s{S_T+1}')
    e(f's_add_u32 s{S_T}, s{S_T}, {WS_OUTP}')
    e(f'v_lshlrev_b32 v{V_T+1}, 2, v{V_LANE}')
    for jj in range(2):
        b = V_S + jj*4
        e(f'v_add_f32 v{b}, v{b}, v{b+1}')
        e(f'v_add_f32 v{b+2}, v{b+2}, v{b+3}')
        e(f'v_add_f32 v{b}, v{b}, v{b+2}')
        e(f'v_mul_f32 v{b}, v{b}, v{V_GATE}')
        e(f'v_min_u32 v{b}, -2, v{b}')
        e(f'buffer_store_dword v{b}, v{V_T+1}, s[{R_WS}:{R_WS+3}], s{S_T} offen offset:{jj*256} sc1')
    e(f's_cmp_eq_u32 s{S_ROLE}, 0')
    e('s_cbranch_scc0 L_end')
    e(f's_cmp_eq_u32 s{S_WI}, 0')
    e('s_cbranch_scc0 L_end')
    e(f's_lshr_b32 s{S_T}, s{S_H}, 3')
    e(f's_and_b32 s{S_T+1}, s{S_H}, 7')
    e(f's_mul_i32 s{S_T+2}, s{S_CB}, {40*2048}')
    e(f's_lshl_b32 s{S_T+3}, s{S_T}, 9')
    e(f's_add_u32 s{S_T+2}, s{S_T+2}, s{S_T+3}')
    e(f's_lshl_b32 s{S_T+3}, s{S_T+1}, 6')
    e(f's_add_u32 s{S_T+2}, s{S_T+2}, s{S_T+3}')
    e(f's_add_u32 s{S_T+2}, s{S_T+2}, {WS_OUTP}')
    e(f'v_lshlrev_b32 v{V_T}, 11, v{V_G}')
    e(f'v_lshl_add_u32 v{V_T}, v{V_N}, 2, v{V_T}')
    Lf = g.uid('fp'); Lfd = g.uid('fpd')
    FR = V_S
    spin_init(g)
    g.lab(Lf)
    e(f's_mov_b32 s{S_T+4}, s{S_T+2}')
    for k in range(10):
        e(f'buffer_load_dword v{FR+k}, v{V_T}, s[{R_WS}:{R_WS+3}], s{S_T+4} offen sc1')
        if k < 9:
            e(f's_add_u32 s{S_T+4}, s{S_T+4}, {4*2048}')
    e('s_waitcnt vmcnt(0)')
    e(f'v_max3_u32 v{V_T+2}, v{FR}, v{FR+1}, v{FR+2}')
    for k in range(3, 9, 2):
        e(f'v_max3_u32 v{V_T+2}, v{V_T+2}, v{FR+k}, v{FR+k+1}')
    e(f'v_max_u32 v{V_T+2}, v{V_T+2}, v{FR+9}')
    e(f'v_cmp_eq_u32 vcc, -1, v{V_T+2}')
    e(f's_cbranch_vccz {Lfd}')
    spin_guard(g, Lfd)
    e('s_sleep 1')
    e(f's_branch {Lf}')
    g.lab(Lfd)
    for k in range(1, 10):
        e(f'v_add_f32 v{FR}, v{FR}, v{FR+k}')
    e(f'v_xor_b32 v{V_T+2}, 16, v{V_LANE}')
    e(f'v_lshlrev_b32 v{V_T+2}, 2, v{V_T+2}')
    e(f'ds_bpermute_b32 v{V_T+3}, v{V_T+2}, v{FR}')
    e('s_waitcnt lgkmcnt(0)')
    e(f'v_add_f32 v{FR}, v{FR}, v{V_T+3}')
    e(f'v_xor_b32 v{V_T+2}, 32, v{V_LANE}')
    e(f'v_lshlrev_b32 v{V_T+2}, 2, v{V_T+2}')
    e(f'ds_bpermute_b32 v{V_T+3}, v{V_T+2}, v{FR}')
    e('s_waitcnt lgkmcnt(0)')
    e(f'v_add_f32 v{FR}, v{FR}, v{V_T+3}')
    e(f'v_cvt_pk_bf16_f32 v{FR}, v{FR}, v{FR}')
    srd(g, R_W, S_OUT, 5120)
    e(f's_mul_i32 s{S_T}, s{S_T}, 640')
    e(f's_lshl_b32 s{S_T+3}, s{S_CB}, 7')
    e(f's_add_u32 s{S_T}, s{S_T}, s{S_T+3}')
    e(f's_lshl_b32 s{S_T+1}, s{S_T+1}, 4')
    e(f's_add_u32 s{S_T}, s{S_T}, s{S_T+1}')
    e(f's_lshl_b32 s{S_T}, s{S_T}, 1')
    e(f'v_lshlrev_b32 v{V_T}, 1, v{V_N}')
    e('s_mov_b64 exec, 0xffff')
    e(f'buffer_store_short v{FR}, v{V_T}, s[{R_W}:{R_W+3}], s{S_T} offen')
    e('s_mov_b64 exec, -1')
    stamp(g, 7)
    g.lab('L_end')
    e('s_endpgm')
    return g


HEADER = open('gated_mix__mha_block_cached__glu_gated_geglu__decode.s.ref').read().split('\n')

def emit(path):
    g = build()
    out = []
    for line in HEADER:
        if line.startswith('; @launch'):
            out.append(f'; @launch grid=(256,1,1) block=(512,1,1) lds={LDS_BYTES}')
            continue
        out.append(line)
        if line.startswith(NAME + ':'):
            break
    out += g.L
    out += ['.section .rodata,"a"', '.p2align 6', f'.amdhsa_kernel {NAME}',
            '  .amdhsa_next_free_vgpr 256', '  .amdhsa_next_free_sgpr 102', '  .amdhsa_accum_offset 256',
            '  .amdhsa_group_segment_fixed_size 0', '  .amdhsa_kernarg_size 104', '  .amdhsa_user_sgpr_count 2',
            '  .amdhsa_user_sgpr_kernarg_segment_ptr 1', '  .amdhsa_system_sgpr_workgroup_id_x 1', '.end_amdhsa_kernel']
    open(path, 'w').write('\n'.join(out) + '\n')

if __name__ == '__main__':
    if '--ts' in sys.argv:
        TS = True
        sys.argv.remove('--ts')
    emit(sys.argv[1] if len(sys.argv) > 1 else 'gated_mix__mha_block_cached__glu_gated_geglu__decode.s')
    print('LDS', LDS_BYTES)
```

```python
import sys, struct

NAME = 'gated_mix__mha_block_cached__glu_gated_geglu__decode_kernel'

def f2u(x):
    return struct.unpack('<I', struct.pack('<f', x))[0]

class G:
    def __init__(self):
        self.L = []
        self.n = 0
    def e(self, s):
        import re
        if s.startswith('buffer_'):
            m = re.search(r'offset:(\d+)', s)
            assert not m or int(m.group(1)) < 4096, s
        if s.startswith('ds_'):
            m = re.search(r'offset:(\d+)', s)
            assert not m or int(m.group(1)) < 65536, s
        self.L.append('    ' + s)
    def lab(self, s):
        self.L.append(s + ':')
    def uid(self, p):
        self.n += 1
        return f'L_{p}_{self.n}'
    def c(self, s):
        self.L.append('    ; ' + s)

class Opt:
    TS = False
    D = 4
    PACE = 12
    PRIO = True
    NOQ = False
    QVAL = 0
    BAL = True
    BALMODE = 0
    BAL2 = True
    GAMMA = 1.0
    PIPE = True
    SIDEB = True
    DELAY = 0
    DELAYQ = 0
    WARM = False
    QPOLL = 0
    NOSTORE = False
    PEVERY = 1
    KPOL = ['nt','nt']
    VPOL = ['nt','nt']
    CURG = 0
    DTS = False
    NOSIDE = False
    SIDEMODE = 0
    NOCOMP = False
O = Opt

NT = 32
WPOL = 'nt'
import os
if os.environ.get('WPOL') is not None: WPOL = os.environ['WPOL']
TB = 6144
KV_BYTES = 402653184
WQ_BYTES = 640 * 6144 * 2
WO_BYTES = 6144 * 640 * 2
WG_BYTES = 640 * 1536 * 2
WD_BYTES = 1536 * 640 * 2
WS_PART = 0
WS_F1 = 0x100000
WS_OUTP = 0x1C0000
WS_QP = 0x290000
WS_EPOCH = 0x410000
WS_BAL = 0x420000
WS_BYTES = 0x430000
WS_TS = 0x500000
L_QS = 0
L_QZ = 768
L_OD = 1024
L_MISC = 4096
L_DA = 4352
L_DP = L_DA + 8 * 3328
L_DP2 = L_DP + 4 * 4096
LDS_USED = L_DP2 + 4 * 2048
LDS_BYTES = 84 * 1024
C_MERGE0 = 0; C_MERGE1 = 4; C_R1DONE = 8; C_SB1 = 12; C_SB2 = 16; C_SB3 = 20; C_QA = 24; C_QRDY = 28; C_SPLIT = 36

V_LANE = 1; V_N = 2; V_G = 3; V_KOFF = 4; V_VOFF = 5
V_MASK = 6
V_L = 10; V_M = 11
V_O = 12
V_QB = 24
V_S = 36
V_PB = 44
V_T = 52
V_TILE = 64
V_EP = 10

S_X = 4; S_K = 6; S_V = 8; S_WQ = 10; S_WO = 12; S_WGATE = 16; S_WUP = 18; S_WDOWN = 20
S_GW = 22; S_OUT = 24; S_DBG = 26; S_WS = 28
S_W = 30; S_WI = 31
R_K = 32; R_V = 36; R_WS = 40; R_W = 44; R_X = 48; R_G = 52
S_H = 56; S_R = 57; S_B0 = 58; S_QT = 59; S_GRP = 60; S_B = 61; S_BH = 62
S_KOFF = 63; S_LOOP = 64; S_C = 65; S_TH = 66; S_REM = 67
S_M1 = 68; S_M2 = 70
S_T = 72
S_F = 88; S_C1 = 89; S_S1 = 90; S_CB = 91; S_SRC = 92; S_ROLE = 93
S_SPIN = 94
S_STRIDE = 95; S_CONS = 84; S_TOT = 85; S_CNT = 86; S_BALO = 83; S_ISB = 82; S_KTRUE = 81
V_PP = V_T + 7; V_DEC = V_T + 8; V_BO = V_T + 10; V_PR = V_T + 11
NSTAT = 24; NMAX = 40
FLEX = 8
S_REM2 = 79; S_K2 = 80; S_SLAB = 82; S_HOOK = 86
S_BMY = 80; S_BPA = 79; S_PROP = 78
S_TAG = 14
SPIN_MAX = 1 << 17


def dstamp(g, k, wv):
    sk = g.uid('ds')
    g.e(f's_cmp_lg_u32 s{S_W}, {wv}')
    g.e(f's_cbranch_scc1 {sk}')
    g.e(f's_mov_b32 s99, {4*k}')
    g.e('s_cmp_eq_u32 s2, 0')
    g.e(f's_cbranch_scc1 {sk}_go')
    g.e(f's_mov_b32 s99, {4*k+32}')
    g.e('s_cmp_eq_u32 s2, 133')
    g.e(f's_cbranch_scc0 {sk}')
    g.lab(sk + '_go')
    g.e('s_memrealtime s[96:97]')
    g.e('s_waitcnt lgkmcnt(0)')
    g.e(f'v_mov_b32 v{V_T+8}, s96')
    g.e(f'v_mov_b32 v{V_T+7}, s99')
    g.e('s_mov_b64 s[100:101], exec')
    g.e('s_mov_b64 exec, 1')
    g.e(f'global_store_dword v{V_T+7}, v{V_T+8}, s[{S_DBG}:{S_DBG+1}]')
    g.e('s_mov_b64 exec, s[100:101]')
    g.e('s_nop 1')
    g.lab(sk)

def stamp(g, k):
    if O.DTS:
        m = {0: [(0, 0)], 1: [(1, 0)], 10: [(2, 0)], 2: [(3, 0)], 3: [(4, 0), (5, 4)], 6: [(6, 0)], 7: [(7, 0)]}
        for (kk, wv) in m.get(k, []):
            dstamp(g, kk, wv)
        return
    if not O.TS: return
    g.e('s_memrealtime s[96:97]')
    g.e(f's_lshl_b32 s98, s2, 3')
    g.e(f's_add_u32 s98, s98, s{S_W}')
    g.e(f's_lshl_b32 s98, s98, 7')
    g.e(f's_add_u32 s98, s98, {WS_TS + k*8}')
    g.e('s_waitcnt lgkmcnt(0)')
    g.e(f'v_mov_b32 v{V_T+8}, s96')
    g.e(f'v_mov_b32 v{V_T+9}, s97')
    g.e(f'v_mov_b32 v{V_T+7}, 0')
    g.e('s_mov_b64 s[100:101], exec')
    g.e('s_mov_b64 exec, 1')
    g.e(f'buffer_store_dwordx2 v[{V_T+8}:{V_T+9}], v{V_T+7}, s[{R_WS}:{R_WS+3}], s98 offen')
    g.e('s_mov_b64 exec, s[100:101]')
    g.e('s_nop 1')

def srd(g, r, sptr, nbytes):
    g.e(f's_mov_b32 s{r}, s{sptr}')
    g.e(f's_and_b32 s{r+1}, s{sptr+1}, 0xffff')
    g.e(f's_mov_b32 s{r+2}, {nbytes}')
    g.e(f's_mov_b32 s{r+3}, 0x20000')

def vr(a, n=4):
    return f'v[{a}:{a+n-1}]'

def spin_init(g):
    g.e(f's_mov_b32 s{S_SPIN}, {SPIN_MAX}')
def spin_guard(g, done):
    g.e(f's_sub_u32 s{S_SPIN}, s{S_SPIN}, 1')
    g.e(f's_cmp_eq_u32 s{S_SPIN}, 0')
    g.e(f's_cbranch_scc1 {done}')

def lds_wait(g, cofs, target, sleep=1):
    lp = g.uid('lw'); dn = g.uid('lwd')
    g.e(f'v_mov_b32 v{V_T+10}, {L_MISC + cofs}')
    spin_init(g)
    g.lab(lp)
    g.e(f'ds_read_b32 v{V_T+11}, v{V_T+10}')
    g.e('s_waitcnt lgkmcnt(0)')
    g.e(f'v_readfirstlane_b32 s{S_T+15}, v{V_T+11}')
    g.e('s_nop 3')
    g.e(f's_cmp_ge_u32 s{S_T+15}, {target}')
    g.e(f's_cbranch_scc1 {dn}')
    spin_guard(g, dn)
    g.e(f's_sleep {sleep}')
    g.e(f's_branch {lp}')
    g.lab(dn)

def lds_inc(g, cofs):
    g.e('s_waitcnt lgkmcnt(0)')
    g.e(f'v_mov_b32 v{V_T+10}, {L_MISC + cofs}')
    g.e(f'v_mov_b32 v{V_T+11}, 1')
    g.e('s_mov_b64 exec, 1')
    g.e(f'ds_add_u32 v{V_T+10}, v{V_T+11}')
    g.e('s_mov_b64 exec, -1')

def subbarrier(g, cofs, target=4):
    lds_inc(g, cofs)
    lds_wait(g, cofs, target)

def wave_sum(g, v, t, sdst):
    for off in (0x041F, 0x081F, 0x101F, 0x201F, 0x401F):
        g.e(f'ds_swizzle_b32 v{t}, v{v} offset:{off:#x}')
        g.e('s_waitcnt lgkmcnt(0)')
        g.e(f'v_add_f32 v{v}, v{v}, v{t}')
    g.e('s_nop 1')
    g.e(f'v_readlane_b32 s{sdst}, v{v}, 0')
    g.e(f'v_readlane_b32 s{sdst+1}, v{v}, 32')
    g.e('s_nop 3')
    g.e(f'v_mov_b32 v{v}, s{sdst}')
    g.e(f'v_add_f32 v{v}, s{sdst+1}, v{v}')

def tile_reg(d, kv, u, jj):
    return V_TILE + d * 48 + kv * 24 + (u * 3 + jj) * 4

def issue_k(g, d):
    for u in range(2):
        for jj in range(3):
            r = tile_reg(d, 0, u, jj)
            g.e(f'buffer_load_dwordx4 {vr(r)}, v{V_KOFF}, s[{R_K}:{R_K+3}], s{S_KOFF} offen offset:{u*3072+jj*256} {O.KPOL[O.CURG]}')

def issue_v(g, d):
    for u in range(2):
        for jj in range(3):
            r = tile_reg(d, 1, u, jj)
            g.e(f'buffer_load_dwordx4 {vr(r)}, v{V_VOFF}, s[{R_V}:{R_V+3}], s{S_KOFF} offen offset:{u*3072+jj*256} {O.VPOL[O.CURG]}')

def switch_run(g):
    ok = g.uid('ar')
    g.e(f's_cmp_lg_u32 s{S_REM}, 0')
    g.e(f's_cbranch_scc1 {ok}')
    g.e(f's_mov_b32 s{S_REM}, s{S_REM2}')
    g.e(f's_mov_b32 s{S_REM2}, 0')
    g.e(f's_mov_b32 s{S_KTRUE}, s{S_K2}')
    g.e(f's_mov_b32 s{S_STRIDE}, {(-4*TB) & 0xffffffff:#x}')
    g.lab(ok)

def advance(g):
    g.e(f's_add_u32 s{S_KTRUE}, s{S_KTRUE}, s{S_STRIDE}')
    g.e(f's_sub_u32 s{S_REM}, s{S_REM}, 1')
    if O.BAL2 and O.CURG == 1:
        switch_run(g)
    g.e(f's_cmp_gt_i32 s{S_REM}, 0')
    g.e(f's_cselect_b32 s{S_KOFF}, s{S_KTRUE}, 0x80000000')

def raw_offsets(g, vd, voa, vob, t0, t1):
    g.e(f'v_lshrrev_b32 v{t0}, 3, v{vd}')
    g.e(f'v_and_b32 v{t1}, 7, v{vd}')
    g.e(f'v_and_b32 v{voa}, 15, v{t0}')
    g.e(f'v_lshrrev_b32 v{vob}, 2, v{voa}')
    g.e(f'v_lshlrev_b32 v{vob}, 4, v{vob}')
    g.e(f'v_add_u32 v{vob}, v{vob}, v{t1}')
    g.e(f'v_lshlrev_b32 v{vob}, 4, v{vob}')
    g.e(f'v_and_b32 v{voa}, 3, v{voa}')
    g.e(f'v_lshl_add_u32 v{voa}, v{voa}, 2, v{vob}')
    g.e(f'v_lshrrev_b32 v{vob}, 4, v{t0}')
    g.e(f'v_lshl_add_u32 v{voa}, v{vob}, 10, v{voa}')
    g.e(f'v_cmp_gt_u32 vcc, 8, v{t0}')
    g.e(f'v_add_u32 v{vob}, 8, v{t0}')
    g.e(f'v_subrev_u32 v{t0}, 8, v{t0}')
    g.e(f'v_cndmask_b32 v{t0}, v{t0}, v{vob}, vcc')
    g.e(f'v_cndmask_b32 v{vob}, 0, 1, vcc')
    g.e(f'v_lshlrev_b32 v{vob}, 10, v{vob}')
    g.e(f'v_sub_u32 v{vob}, 2048, v{vob}')
    g.e(f'v_add_u32 v{t1}, 8, v{t1}')
    g.e(f'v_and_b32 v{V_T+9}, 3, v{t0}')
    g.e(f'v_lshl_add_u32 v{vob}, v{V_T+9}, 2, v{vob}')
    g.e(f'v_lshrrev_b32 v{t0}, 2, v{t0}')
    g.e(f'v_lshl_add_u32 v{t0}, v{t0}, 4, v{t1}')
    g.e(f'v_lshl_add_u32 v{vob}, v{t0}, 4, v{vob}')

def pair_offset(g, vo):
    t = V_T + 9
    g.e(f'v_and_b32 v{vo}, 3, v{V_LANE}')
    g.e(f'v_lshlrev_b32 v{vo}, 1, v{vo}')
    g.e(f'v_lshl_add_u32 v{vo}, v{V_G}, 4, v{vo}')
    g.e(f'v_lshlrev_b32 v{vo}, 4, v{vo}')
    g.e(f'v_bfe_u32 v{t}, v{V_LANE}, 2, 2')
    g.e(f'v_lshl_add_u32 v{vo}, v{t}, 2, v{vo}')
    g.e(f's_and_b32 s{S_T}, s{S_WI}, 1')
    g.e(f's_lshl_b32 s{S_T}, s{S_T}, 7')
    g.e(f's_lshr_b32 s{S_T+1}, s{S_WI}, 1')
    g.e(f's_lshl_b32 s{S_T+1}, s{S_T+1}, 10')
    g.e(f's_add_u32 s{S_T}, s{S_T}, s{S_T+1}')
    g.e(f'v_add_u32 v{vo}, s{S_T}, v{vo}')

def tag_check(g, regs, acc, t):
    first = True
    for r in regs:
        g.e(f'v_xor_b32 v{t}, s{S_TAG}, v{r+2}')
        if first:
            g.e(f'v_xor_b32 v{acc}, s{S_TAG+1}, v{r+3}')
            g.e(f'v_or_b32 v{acc}, v{acc}, v{t}')
            first = False
        else:
            g.e(f'v_xor_b32 v{t+1}, s{S_TAG+1}, v{r+3}')
            g.e(f'v_or3_b32 v{acc}, v{acc}, v{t}, v{t+1}')

def light_poll(g, voff, soff, nlanes, sleep, tmp):
    lp = g.uid('lp'); dn = g.uid('lpd')
    g.e(f's_mov_b64 exec, {(1 << nlanes) - 1:#x}')
    spin_init(g)
    g.lab(lp)
    g.e(f'buffer_load_dwordx4 {vr(tmp)}, v{voff}, s[{R_WS}:{R_WS+3}], s{soff} offen sc1')
    g.e('s_waitcnt vmcnt(0)')
    g.e(f'v_xor_b32 v{tmp}, s{S_TAG}, v{tmp+2}')
    g.e(f'v_xor_b32 v{tmp+1}, s{S_TAG+1}, v{tmp+3}')
    g.e(f'v_or_b32 v{tmp}, v{tmp}, v{tmp+1}')
    g.e(f'v_cmp_ne_u32 vcc, 0, v{tmp}')
    g.e(f's_cbranch_vccz {dn}')
    spin_guard(g, dn)
    g.e(f's_sleep {sleep}')
    g.e(f's_branch {lp}')
    g.lab(dn)
    g.e('s_mov_b64 exec, -1')

def store_gran(g, base, voff, soff, imm=0):
    g.e(f'v_mov_b32 v{base+2}, s{S_TAG}')
    g.e(f'v_mov_b32 v{base+3}, s{S_TAG+1}')
    g.e(f'buffer_store_dwordx4 {vr(base)}, v{voff}, s[{R_WS}:{R_WS+3}], s{soff} offen offset:{imm} sc1')


def main_loop(g, gi):
    e = g.e
    D = O.D
    g.lab(f'L_main_{gi}')
    NW = 6 + 12 * (D - 1)
    X0 = V_T; X1 = V_T + 1; Y0 = V_T + 2; Y1 = V_T + 3; E0 = V_T + 4; E1 = V_T + 5; MX = V_T + 6
    for d in range(D):
        Lr = f'L_resc_{gi}_{d}'; Lb = f'L_back_{gi}_{d}'
        if O.NOCOMP:
            e(f's_cmp_ge_u32 s{S_CONS}, s{S_TOT}')
            e('s_cbranch_scc1 L_fin')
            e(f's_add_u32 s{S_CONS}, s{S_CONS}, 1')
            e(f's_waitcnt vmcnt({NW})')
            issue_k(g, d)
            e(f's_waitcnt vmcnt({NW})')
            issue_v(g, d)
            advance(g)
            g.lab(Lb)
            continue
        e(f's_cmp_ge_u32 s{S_CONS}, s{S_TOT}')
        e('s_cbranch_scc1 L_fin')
        e(f's_add_u32 s{S_CONS}, s{S_CONS}, 1')
        e(f's_waitcnt vmcnt({NW})')
        for jj in range(3):
            for u in range(2):
                s = V_S + u * 4
                cc = '0' if jj == 0 else vr(s)
                e(f'v_mfma_f32_16x16x32_bf16 {vr(s)}, {vr(tile_reg(d,0,u,jj))}, {vr(V_QB+jj*4)}, {cc}')
        issue_k(g, d)
        e('s_nop 1')
        e(f'v_cndmask_b32 v{X0}, v{V_S+0}, v{V_S+1}, s[{S_M1}:{S_M1+1}]')
        e(f'v_cndmask_b32 v{Y0}, v{V_S+2}, v{V_S+3}, s[{S_M1}:{S_M1+1}]')
        e(f'v_cndmask_b32 v{X1}, v{V_S+4}, v{V_S+5}, s[{S_M1}:{S_M1+1}]')
        e(f'v_cndmask_b32 v{Y1}, v{V_S+6}, v{V_S+7}, s[{S_M1}:{S_M1+1}]')
        e(f'v_cndmask_b32 v{X0}, v{X0}, v{Y0}, s[{S_M2}:{S_M2+1}]')
        e(f'v_cndmask_b32 v{X1}, v{X1}, v{Y1}, s[{S_M2}:{S_M2+1}]')
        e('s_nop 0')
        e(f'v_add_f32_dpp v{X0}, v{X0}, v{X0} quad_perm:[1,0,3,2] row_mask:0xf bank_mask:0xf')
        e(f'v_add_f32_dpp v{X1}, v{X1}, v{X1} quad_perm:[1,0,3,2] row_mask:0xf bank_mask:0xf')
        e('s_nop 0')
        e(f'v_add_f32_dpp v{X0}, v{X0}, v{X0} quad_perm:[2,3,0,1] row_mask:0xf bank_mask:0xf')
        e(f'v_add_f32_dpp v{X1}, v{X1}, v{X1} quad_perm:[2,3,0,1] row_mask:0xf bank_mask:0xf')
        e(f'v_fma_f32 v{E0}, v{X0}, s{S_C}, -v{V_M}')
        e(f'v_fma_f32 v{E1}, v{X1}, s{S_C}, -v{V_M}')
        e(f'v_max_f32 v{MX}, v{E0}, v{E1}')
        e(f'v_cmp_lt_f32 vcc, s{S_TH}, v{MX}')
        e(f's_cbranch_vccnz {Lr}')
        g.lab(Lb)
        e(f'v_exp_f32 v{E0}, v{E0}')
        e(f'v_exp_f32 v{E1}, v{E1}')
        e('s_nop 0')
        e(f'v_cvt_pk_bf16_f32 v{X0}, v{E0}, v{E0}')
        e(f'v_cvt_pk_bf16_f32 v{X1}, v{E1}, v{E1}')
        e(f'v_add_f32 v{V_L}, v{V_L}, v{E0}')
        e(f'v_add_f32 v{V_L}, v{V_L}, v{E1}')
        for i in range(4):
            e(f'v_and_b32 v{V_PB+i}, v{X0}, v{V_MASK+i}')
        for i in range(4):
            e(f'v_and_b32 v{V_PB+4+i}, v{X1}, v{V_MASK+i}')
        e(f's_waitcnt vmcnt({NW})')
        for u in range(2):
            for jj in range(3):
                o = V_O + jj * 4
                e(f'v_mfma_f32_16x16x32_bf16 {vr(o)}, {vr(tile_reg(d,1,u,jj))}, {vr(V_PB+u*4)}, {vr(o)}')
        issue_v(g, d)
        advance(g)
    if O.BAL2 and gi == 1:
        e(f's_add_u32 s{S_LOOP}, s{S_LOOP}, 1')
        e(f's_cmp_lg_u32 s{S_LOOP}, s{S_HOOK}')
        e(f's_cbranch_scc1 L_main_{gi}')
        lds_wait(g, C_SPLIT, 1, sleep=1)
        W_ = S_T + 15
        e(f's_and_b32 s{S_T}, s{W_}, 0xff')
        e(f's_bfe_u32 s{S_T+1}, s{W_}, 0x80008')
        e(f's_bfe_u32 s{S_T+2}, s{W_}, 0x80010')
        e(f's_mov_b32 s{S_T+3}, 0')
        e(f's_mov_b32 s{S_T+4}, s{S_T}')
        e(f's_cmp_ge_u32 s{S_QT}, 1')
        e(f's_cselect_b32 s{S_T+3}, s{S_T}, s{S_T+3}')
        e(f's_cselect_b32 s{S_T+4}, s{S_T+1}, s{S_T+4}')
        e(f's_cmp_ge_u32 s{S_QT}, 2')
        e(f's_cselect_b32 s{S_T+3}, s{S_T+1}, s{S_T+3}')
        e(f's_cselect_b32 s{S_T+4}, s{S_T+2}, s{S_T+4}')
        e(f's_cmp_ge_u32 s{S_QT}, 3')
        e(f's_cselect_b32 s{S_T+3}, s{S_T+2}, s{S_T+3}')
        e(f's_cselect_b32 s{S_T+4}, 128, s{S_T+4}')
        e(f's_sub_u32 s{S_TOT}, s{S_T+4}, s{S_T+3}')
        e(f's_lshl_b32 s{S_T}, s{S_QT}, 5')
        e(f's_add_u32 s{S_T}, s{S_T}, {FLEX}')
        e(f's_sub_u32 s{S_REM2}, s{S_T}, s{S_T+3}')
        e(f's_add_u32 s{S_T+1}, s{S_QT}, 1')
        e(f's_and_b32 s{S_T+1}, s{S_T+1}, 2')
        e(f's_cmp_eq_u32 s{S_T+1}, 0')
        e(f's_cselect_b32 s{S_REM2}, 0, s{S_REM2}')
        e(f's_sub_u32 s{S_REM}, s{S_TOT}, s{S_REM2}')
        e(f's_lshl_b32 s{S_T}, s{S_HOOK}, 2')
        e(f's_add_u32 s{S_T}, s{S_T}, 4')
        e(f's_sub_u32 s{S_REM}, s{S_REM}, s{S_T}')
        switch_run(g)
        e(f's_cmp_gt_i32 s{S_REM}, 0')
        e(f's_cselect_b32 s{S_KOFF}, s{S_KTRUE}, 0x80000000')
        e(f's_branch L_main_{gi}')
    else:
        e(f's_branch L_main_{gi}')
    for d in range(D):
        Lr = f'L_resc_{gi}_{d}'; Lb = f'L_back_{gi}_{d}'
        g.lab(Lr)
        e(f'v_mul_f32 v{X0}, s{S_C}, v{X0}')
        e(f'v_mul_f32 v{X1}, s{S_C}, v{X1}')
        e(f'v_max_f32 v{MX}, v{X0}, v{X1}')
        e('s_nop 1')
        e(f'v_max_f32_dpp v{MX}, v{MX}, v{MX} row_ror:8 row_mask:0xf bank_mask:0xf')
        e('s_nop 1')
        e(f'v_readlane_b32 s{S_T}, v{MX}, 0')
        e(f'v_readlane_b32 s{S_T+1}, v{MX}, 16')
        e(f'v_readlane_b32 s{S_T+2}, v{MX}, 32')
        e(f'v_readlane_b32 s{S_T+3}, v{MX}, 48')
        e('s_nop 3')
        e(f'v_max_f32 v{MX}, s{S_T}, v{V_M}')
        e(f'v_max_f32 v{MX}, s{S_T+1}, v{MX}')
        e(f'v_max_f32 v{MX}, s{S_T+2}, v{MX}')
        e(f'v_max_f32 v{MX}, s{S_T+3}, v{MX}')
        e(f'v_sub_f32 v{Y0}, v{V_M}, v{MX}')
        e(f'v_exp_f32 v{Y0}, v{Y0}')
        e(f'v_mov_b32 v{V_M}, v{MX}')
        e('s_nop 7')
        for i in range(12):
            e(f'v_mul_f32 v{V_O+i}, v{V_O+i}, v{Y0}')
        e(f'v_mul_f32 v{V_L}, v{V_L}, v{Y0}')
        e(f'v_sub_f32 v{E0}, v{X0}, v{V_M}')
        e(f'v_sub_f32 v{E1}, v{X1}, v{V_M}')
        e(f's_branch {Lb}')


def take_epoch(g):
    g.e(f'v_readfirstlane_b32 s{S_TAG}, v{V_EP}')
    g.e(f'v_readfirstlane_b32 s{S_TAG+1}, v{V_EP+1}')
    g.e('s_nop 3')

def build():
    g = G()
    e = g.e
    D = O.D
    e(f's_cmp_ge_u32 s2, 256')
    e('s_cbranch_scc1 L_end')
    e('s_load_dwordx16 s[4:19], s[0:1], 0')
    e('s_load_dwordx8 s[20:27], s[0:1], 64')
    e('s_load_dwordx2 s[28:29], s[0:1], 96')
    e(f'v_and_b32 v{V_LANE}, 63, v0')
    e(f'v_lshrrev_b32 v{V_T}, 6, v0')
    e(f'v_and_b32 v{V_N}, 15, v{V_LANE}')
    e(f'v_lshrrev_b32 v{V_G}, 4, v{V_LANE}')
    e(f'v_readfirstlane_b32 s{S_W}, v{V_T}')
    e(f's_and_b32 s{S_QT}, s2, 3')
    e(f's_bfe_u32 s{S_H}, s2, 0x50002')
    e(f's_lshr_b32 s{S_B0}, s2, 7')
    e(f's_lshl_b32 s{S_R}, s{S_B0}, 2')
    e(f's_add_u32 s{S_R}, s{S_R}, s{S_QT}')
    e(f's_lshr_b32 s{S_GRP}, s{S_W}, 2')
    e(f's_and_b32 s{S_WI}, s{S_W}, 3')
    e(f's_lshl_b32 s{S_B}, s{S_GRP}, 1')
    e(f's_add_u32 s{S_B}, s{S_B}, s{S_B0}')
    e(f's_lshl_b32 s{S_BH}, s{S_B}, 5')
    e(f's_add_u32 s{S_BH}, s{S_BH}, s{S_H}')
    e(f's_mul_i32 s{S_KOFF}, s{S_BH}, 3145728')
    e(f's_mul_i32 s{S_T+1}, s{S_WI}, {TB}')
    e(f's_add_u32 s{S_SLAB}, s{S_KOFF}, s{S_T+1}')
    e(f's_lshl_b32 s{S_T}, s{S_QT}, 5')
    e(f's_mov_b32 s{S_STRIDE}, {4*TB}')
    e(f's_mov_b32 s{S_REM}, {NT}')
    e(f's_mov_b32 s{S_TOT}, {NT}')
    e(f's_mov_b32 s{S_REM2}, 0')
    if O.BAL2:
        Lb2 = g.uid('b2'); Lb3 = g.uid('b3')
        e(f's_cmp_eq_u32 s{S_GRP}, 0')
        e(f's_cbranch_scc1 {Lb2}')
        e(f's_mov_b32 s{S_REM}, 1000')
        e(f's_mov_b32 s{S_TOT}, 1000')
        e(f's_cmp_eq_u32 s{S_QT}, 0')
        e(f's_cbranch_scc1 {Lb2}')
        e(f's_add_u32 s{S_T}, s{S_T}, {FLEX}')
        e(f's_cmp_eq_u32 s{S_QT}, 3')
        e(f's_cbranch_scc0 {Lb2}')
        e(f's_mov_b32 s{S_T}, 127')
        e(f's_mov_b32 s{S_STRIDE}, {(-4*TB) & 0xffffffff:#x}')
        g.lab(Lb2)
    e(f's_mul_i32 s{S_T+1}, s{S_T}, {4*TB}')
    e(f's_add_u32 s{S_KOFF}, s{S_SLAB}, s{S_T+1}')
    e(f's_sub_u32 s{S_K2}, s{S_KOFF}, {4*TB}')
    e(f's_lshr_b32 s{S_BALO}, s2, 2')
    e(f's_lshl_b32 s{S_BALO}, s{S_BALO}, 6')
    e(f's_add_u32 s{S_BALO}, s{S_BALO}, {WS_BAL}')
    e(f's_add_u32 s{S_T+1}, s{S_QT}, 1')
    e(f's_and_b32 s{S_T+1}, s{S_T+1}, 2')
    e(f's_cmp_eq_u32 s{S_T+1}, 0')
    e(f's_cselect_b32 s{S_HOOK}, {(32-FLEX-4)//4}, {(32-2*FLEX-4)//4}')
    e(f's_mov_b32 s{S_KTRUE}, s{S_KOFF}')
    e(f's_mov_b32 s{S_CONS}, 0')
    e(f's_mul_i32 s{S_F}, s{S_H}, 3')
    e(f's_add_u32 s{S_F}, s{S_F}, s{S_R}')
    e(f's_sub_u32 s{S_F}, s{S_F}, 5')
    e(f's_mul_i32 s{S_S1}, s{S_F}, 43')
    e(f's_lshr_b32 s{S_S1}, s{S_S1}, 9')
    e(f's_mul_i32 s{S_T}, s{S_S1}, 12')
    e(f's_sub_u32 s{S_C1}, s{S_F}, s{S_T}')
    e(f's_mov_b32 s{S_CB}, s{S_R}')
    e(f's_mov_b32 s{S_SRC}, s{S_H}')
    e(f's_mov_b32 s{S_ROLE}, 0')
    Lrd = g.uid('rd')
    e(f's_cmp_ge_u32 s{S_R}, 5')
    e(f's_cbranch_scc0 {Lrd}')
    e(f's_mov_b32 s{S_CB}, s{S_C1}')
    e(f's_add_u32 s{S_SRC}, s{S_S1}, 32')
    e(f's_mov_b32 s{S_ROLE}, 1')
    e(f's_cmp_ge_u32 s{S_C1}, 5')
    e(f's_cbranch_scc0 {Lrd}')
    e(f's_mov_b32 s{S_ROLE}, 2')
    g.lab(Lrd)
    e(f'v_and_b32 v{V_T}, 3, v{V_N}')
    e(f'v_lshrrev_b32 v{V_T+1}, 2, v{V_N}')
    e(f'v_mul_u32_u24 v{V_KOFF}, 768, v{V_T+1}')
    e(f'v_lshl_add_u32 v{V_KOFF}, v{V_T}, 4, v{V_KOFF}')
    e(f'v_lshl_add_u32 v{V_KOFF}, v{V_G}, 6, v{V_KOFF}')
    e(f'v_mul_u32_u24 v{V_VOFF}, 768, v{V_G}')
    e(f'v_lshl_add_u32 v{V_VOFF}, v{V_N}, 4, v{V_VOFF}')
    e(f'v_and_b32 v{V_T}, 1, v{V_N}')
    e(f'v_cmp_ne_u32 s[{S_M1}:{S_M1+1}], 0, v{V_T}')
    e(f'v_and_b32 v{V_T}, 2, v{V_N}')
    e(f'v_cmp_ne_u32 s[{S_M2}:{S_M2+1}], 0, v{V_T}')
    e(f'v_mov_b32 v{V_T+1}, 0xffff')
    e(f'v_mov_b32 v{V_T+2}, 0xffff0000')
    e(f'v_cndmask_b32 v{V_T+1}, v{V_T+1}, v{V_T+2}, s[{S_M1}:{S_M1+1}]')
    e(f'v_bfe_u32 v{V_T}, v{V_N}, 1, 2')
    for i in range(4):
        e(f'v_cmp_eq_u32 vcc, {i}, v{V_T}')
        e('s_nop 1')
        e(f'v_cndmask_b32 v{V_MASK+i}, 0, v{V_T+1}, vcc')
    e(f's_mov_b32 s{S_C}, {f2u((192 ** -0.5) * 1.4426950408889634):#x}')
    e(f's_mov_b32 s{S_TH}, {f2u(8.0):#x}')
    e(f'v_lshlrev_b32 v{V_T}, 2, v{V_LANE}')
    e(f'v_add_u32 v{V_T}, {L_MISC}, v{V_T}')
    e(f'v_mov_b32 v{V_T+1}, 0')
    e(f'ds_write_b32 v{V_T}, v{V_T+1}')
    e(f'v_mov_b32 v{V_T}, {L_QZ}')
    for k in range(4):
        e(f'ds_write_b32 v{V_T}, v{V_T+1} offset:{4*k}')
    e('s_waitcnt lgkmcnt(0)')
    e('s_barrier')
    e('s_memrealtime s[96:97]')
    srd(g, R_K, S_K, KV_BYTES)
    srd(g, R_V, S_V, KV_BYTES)
    srd(g, R_WS, S_WS, WS_BYTES if not O.TS else WS_TS + 0x40000)
    srd(g, R_W, S_WQ, WQ_BYTES)
    srd(g, R_X, S_X, 5120)
    e(f'v_mov_b32 v{V_EP}, {WS_EPOCH}')
    e(f'buffer_load_dwordx2 v[{V_EP}:{V_EP+1}], v{V_EP}, s[{R_WS}:{R_WS+3}], 0 offen sc1')
    stamp(g, 0)
    e('s_waitcnt lgkmcnt(0)')
    e(f's_mov_b32 s{S_PROP}, s96')
    e(f's_cmp_eq_u32 s{S_GRP}, 0')
    e('s_cbranch_scc1 L_qphase')
    O.CURG = 1
    groups = []
    for d in range(D):
        groups.append(('k', d)); groups.append(('v', d))
    for i, (kv, d) in enumerate(groups):
        if O.DELAY and i == O.DELAY - 1:
            lds_wait(g, C_QA, 4, sleep=1)
        if O.DELAYQ and i == O.DELAYQ - 1:
            lds_wait(g, C_QRDY, 4, sleep=1)
        if O.PACE and (i * 6) > O.PACE:
            e(f's_waitcnt vmcnt({O.PACE})')
        if kv == 'k':
            issue_k(g, d)
        else:
            issue_v(g, d); advance(g)
    lds_wait(g, C_QRDY, 4, sleep=1)
    e('s_branch L_qready')
    O.CURG = 0
    g.lab('L_qphase')
    if O.NOQ:
        e('s_waitcnt lgkmcnt(0)')
        e(f's_mul_i32 s{S_TAG}, s{S_TAG}, 0x9E3779B1')
        e(f's_add_u32 s{S_TAG}, s{S_TAG}, 0x632BE5AB')
        e(f's_lshr_b32 s{S_T+4}, s{S_TAG}, 15')
        e(f's_xor_b32 s{S_TAG+1}, s{S_TAG+1}, s{S_T+4}')
        e(f's_mul_i32 s{S_TAG+1}, s{S_TAG+1}, 0x85EBCA6B')
        e(f's_add_u32 s{S_TAG+1}, s{S_TAG+1}, 0xC2B2AE35')
        e(f'v_lshlrev_b32 v{V_T}, 2, v{V_LANE}')
        e(f'v_mov_b32 v{V_T+1}, {O.QVAL:#x}')
        e(f'v_xor_b32 v{V_T+1}, v{V_T+1}, v{V_T}') if O.QVAL else None
        for k in range(3):
            e(f'ds_write_b32 v{V_T}, v{V_T+1} offset:{k*256}')
        subbarrier(g, C_QRDY)
        for d in range(D):
            issue_k(g, d); issue_v(g, d); advance(g)
        e('s_branch L_qready2')
    if O.PRIO:
        e('s_setprio 3')
    if O.WARM:
        e(f's_mul_i32 s{S_T}, s{S_H}, {8*6144}')
        e(f's_add_u32 s{S_T}, s{S_T}, {WS_QP}')
        e(f'v_mov_b32 v{V_T}, 0')
        e(f'buffer_load_dword v{V_TILE+60}, v{V_T}, s[{R_WS}:{R_WS+3}], s{S_T} offen sc1')
        e(f's_add_u32 s{S_T}, s{S_T}, {8*6144-64}')
        e(f'buffer_load_dword v{V_TILE+61}, v{V_T}, s[{R_WS}:{R_WS+3}], s{S_T} offen sc1')
    XV = V_TILE + 40
    AX = V_TILE
    AY = V_TILE + 20
    e(f'v_lshrrev_b32 v{V_T}, 3, v{V_N}')
    e(f'v_mul_u32_u24 v{V_T}, 640, v{V_T}')
    e(f'v_add_lshl_u32 v{V_T}, v{V_T}, v{V_G}, 1')
    e(f's_mul_i32 s{S_T+2}, s{S_R}, 80')
    e(f's_mul_i32 s{S_T+1}, s{S_WI}, 20')
    e(f's_add_u32 s{S_T+2}, s{S_T+2}, s{S_T+1}')
    e(f's_lshl_b32 s{S_T+1}, s{S_T+2}, 1')
    e(f'v_mul_u32_u24 v{V_T+1}, 12288, v{V_G}')
    e(f'v_lshl_add_u32 v{V_T+1}, v{V_N}, 4, v{V_T+1}')
    e(f'v_add_u32 v{V_T+2}, 256, v{V_T+1}')
    e(f'v_mov_b32 v{V_T+3}, 0x40000000')
    e(f'v_cmp_gt_u32 vcc, 8, v{V_N}')
    e(f's_mul_i32 s{S_T}, s{S_T+2}, 12288')
    e(f's_mul_i32 s{S_T+3}, s{S_H}, 384')
    e(f'v_cndmask_b32 v{V_T+2}, v{V_T+3}, v{V_T+2}, vcc')
    e(f's_add_u32 s{S_T}, s{S_T}, s{S_T+3}')
    for t in range(5):
        e(f'buffer_load_dwordx4 {vr(AX+t*4)}, v{V_T+1}, s[{R_W}:{R_W+3}], s{S_T} offen {WPOL}')
        e(f'buffer_load_dwordx4 {vr(AY+t*4)}, v{V_T+2}, s[{R_W}:{R_W+3}], s{S_T} offen {WPOL}')
        if t < 4:
            e(f's_add_u32 s{S_T}, s{S_T}, {4*12288}')
    for t in range(5):
        for P in range(2):
            e(f'buffer_load_ushort v{XV + t*2 + P}, v{V_T}, s[{R_X}:{R_X+3}], s{S_T+1} offen offset:{t*8 + P*2560}')
    def mix():
        e(f's_mul_i32 s{S_TAG}, s{S_TAG}, 0x9E3779B1')
        e(f's_add_u32 s{S_TAG}, s{S_TAG}, 0x632BE5AB')
        e(f's_lshr_b32 s{S_T+4}, s{S_TAG}, 15')
        e(f's_xor_b32 s{S_TAG+1}, s{S_TAG+1}, s{S_T+4}')
        e(f's_mul_i32 s{S_TAG+1}, s{S_TAG+1}, 0x85EBCA6B')
        e(f's_add_u32 s{S_TAG+1}, s{S_TAG+1}, 0xC2B2AE35')
    e('s_waitcnt vmcnt(0)')
    take_epoch(g)
    mix()
    stamp(g, 1)
    for k in range(10):
        e(f'v_lshl_or_b32 v{XV+k}, v{XV+k}, 16, v{XV+k}')
    QD = V_O
    for t in range(5):
        for P in range(2):
            for i in range(4):
                e(f'v_and_b32 v{V_PB + P*4 + i}, v{XV + t*2 + P}, v{V_MASK+i}')
        e('s_nop 1')
        for xy in range(2):
            for P in range(2):
                dd = QD + (xy*2+P)*4
                cc = '0' if t == 0 else vr(dd)
                a = (AX if xy == 0 else AY) + t*4
                e(f'v_mfma_f32_16x16x32_bf16 {vr(dd)}, {vr(a)}, {vr(V_PB+P*4)}, {cc}')
    e('s_nop 7')
    e('s_nop 3')
    e(f's_lshl_b32 s{S_T}, s{S_WI}, 12')
    e(f'v_lshlrev_b32 v{V_T}, 4, v{V_LANE}')
    e(f'v_add_u32 v{V_T}, s{S_T}, v{V_T}')
    for k in range(4):
        e(f'ds_write_b128 v{V_T}, {vr(QD+k*4)} offset:{L_DP + k*1024}')
    subbarrier(g, C_QA)
    stamp(g, 8)
    pair_offset(g, V_T)
    for xy in range(2):
        for el in range(2):
            for wv in range(4):
                e(f'ds_read_b32 v{V_S + (xy*2+el)*4 + wv}, v{V_T} offset:{L_DP + wv*4096 + xy*2048 + el*16}')
    e('s_waitcnt lgkmcnt(0)')
    GA = V_TILE
    for xy in range(2):
        for el in range(2):
            b = V_S + (xy*2+el)*4
            e(f'v_add_f32 v{b}, v{b}, v{b+1}')
            e(f'v_add_f32 v{b+2}, v{b+2}, v{b+3}')
            e(f'v_add_f32 v{GA + xy*4 + el}, v{b}, v{b+2}')
    e(f's_lshl_b32 s{S_T}, s{S_H}, 3')
    e(f's_add_u32 s{S_T}, s{S_T}, s{S_R}')
    e(f's_lshl_b32 s{S_T}, s{S_T}, 2')
    e(f's_add_u32 s{S_T}, s{S_T}, s{S_WI}')
    e(f's_mul_i32 s{S_T}, s{S_T}, 1536')
    e(f's_add_u32 s{S_T}, s{S_T}, {WS_QP}')
    e(f'v_lshlrev_b32 v{V_T+1}, 4, v{V_LANE}')
    store_gran(g, GA, V_T+1, S_T, 0)
    e('s_mov_b32 exec_hi, 0')
    store_gran(g, GA+4, V_T+1, S_T, 1024)
    e('s_mov_b64 exec, -1')
    stamp(g, 9)
    e(f's_lshr_b32 s{S_T+1}, s{S_WI}, 1')
    e(f's_and_b32 s{S_T+2}, s{S_WI}, 1')
    e(f's_lshl_b32 s{S_T+3}, s{S_T+1}, 1')
    e(f's_add_u32 s{S_T+3}, s{S_T+3}, s{S_B0}')
    e(f's_lshl_b32 s{S_T}, s{S_H}, 5')
    e(f's_add_u32 s{S_T}, s{S_T}, s{S_T+3}')
    e(f's_mul_i32 s{S_T}, s{S_T}, 1536')
    e(f's_mul_i32 s{S_T+3}, s{S_T+2}, {48*16}')
    e(f's_add_u32 s{S_T}, s{S_T}, s{S_T+3}')
    e(f's_add_u32 s{S_T}, s{S_T}, {WS_QP}')
    e(f'v_min_u32 v{V_T+1}, 47, v{V_LANE}')
    e(f'v_lshlrev_b32 v{V_T+1}, 4, v{V_T+1}')
    GQ = V_TILE + 8
    GQ2 = V_TILE + 48
    Lq = g.uid('qp'); Lqd = g.uid('qpd')
    def qissue(base):
        e(f's_mov_b32 s{S_T+4}, s{S_T}')
        for rr in range(8):
            e(f'buffer_load_dwordx4 {vr(base+rr*4)}, v{V_T+1}, s[{R_WS}:{R_WS+3}], s{S_T+4} offen sc1')
            if rr < 7:
                e(f's_add_u32 s{S_T+4}, s{S_T+4}, 6144')
    spin_init(g)
    if not O.PIPE:
        g.lab(Lq)
        qissue(GQ)
        e('s_waitcnt vmcnt(0)')
        tag_check(g, [GQ+rr*4 for rr in range(8)], V_T+2, V_T+3)
        e(f'v_cmp_ne_u32 vcc, 0, v{V_T+2}')
        e(f's_cbranch_vccz {Lqd}')
        spin_guard(g, Lqd)
        e('s_sleep 1')
        e(f's_branch {Lq}')
    else:
        Lq2 = g.uid('qp2')
        qissue(GQ)
        g.lab(Lq)
        e('s_sleep 6')
        qissue(GQ2)
        e('s_waitcnt vmcnt(8)')
        tag_check(g, [GQ+rr*4 for rr in range(8)], V_T+2, V_T+3)
        e(f'v_cmp_ne_u32 vcc, 0, v{V_T+2}')
        e(f's_cbranch_vccz {Lqd}')
        spin_guard(g, Lqd)
        e('s_sleep 6')
        qissue(GQ)
        e('s_waitcnt vmcnt(8)')
        tag_check(g, [GQ2+rr*4 for rr in range(8)], V_T+2, V_T+3)
        e(f'v_cmp_ne_u32 vcc, 0, v{V_T+2}')
        e(f's_cbranch_vccnz {Lq}')
        e('s_waitcnt vmcnt(0)')
        for rr in range(8):
            e(f'v_mov_b32 v{GQ+rr*4}, v{GQ2+rr*4}')
            e(f'v_mov_b32 v{GQ+rr*4+1}, v{GQ2+rr*4+1}')
    g.lab(Lqd)
    stamp(g, 10)
    for rr in range(1, 8):
        e(f'v_add_f32 v{GQ}, v{GQ}, v{GQ+rr*4}')
        e(f'v_add_f32 v{GQ+1}, v{GQ+1}, v{GQ+rr*4+1}')
    e(f'v_cvt_pk_bf16_f32 v{GQ}, v{GQ}, v{GQ+1}')
    e(f's_mul_i32 s{S_T+1}, s{S_T+1}, 384')
    e(f's_mul_i32 s{S_T+2}, s{S_T+2}, 192')
    e(f's_add_u32 s{S_T+1}, s{S_T+1}, s{S_T+2}')
    e(f'v_min_u32 v{V_T+1}, 47, v{V_LANE}')
    e(f'v_lshlrev_b32 v{V_T+1}, 2, v{V_T+1}')
    e(f'v_add_u32 v{V_T+1}, s{S_T+1}, v{V_T+1}')
    e(f'ds_write_b32 v{V_T+1}, v{GQ} offset:{L_QS}')
    subbarrier(g, C_QRDY)
    if O.PRIO:
        e('s_setprio 0')
    e('s_waitcnt vmcnt(0)')
    for d in range(D):
        issue_k(g, d); issue_v(g, d); advance(g)
    e('s_branch L_qready2')
    g.lab('L_qready')
    e(f's_waitcnt vmcnt({12*D})')
    take_epoch(g)
    mix()
    g.lab('L_qready2')
    stamp(g, 2)
    e(f'v_and_b32 v{V_T}, 3, v{V_N}')
    e(f'v_lshl_add_u32 v{V_T}, v{V_G}, 2, v{V_T}')
    e(f'v_lshlrev_b32 v{V_T}, 4, v{V_T}')
    e(f's_mul_i32 s{S_T}, s{S_GRP}, 384')
    e(f's_add_u32 s{S_T}, s{S_T}, {L_QS}')
    e(f'v_add_u32 v{V_T}, s{S_T}, v{V_T}')
    e(f'v_mov_b32 v{V_T+1}, {L_QZ}')
    e(f'v_cmp_gt_u32 s[{S_T+2}:{S_T+3}], 8, v{V_N}')
    e(f'v_cmp_gt_u32 s[{S_T+4}:{S_T+5}], 2, v{V_G}')
    e('s_nop 1')
    e(f'v_cndmask_b32 v{V_T+2}, v{V_T+1}, v{V_T}, s[{S_T+2}:{S_T+3}]')
    e(f'v_add_u32 v{V_T+3}, 128, v{V_T}')
    e(f'v_cndmask_b32 v{V_T+4}, v{V_T+3}, v{V_T+1}, s[{S_T+2}:{S_T+3}]')
    e(f'v_add_u32 v{V_T+3}, 256, v{V_T}')
    e(f'v_cndmask_b32 v{V_T+3}, v{V_T+1}, v{V_T+3}, s[{S_T+4}:{S_T+5}]')
    e(f'v_subrev_u32 v{V_T+5}, 128, v{V_T}')
    e(f'v_cndmask_b32 v{V_T+5}, v{V_T+5}, v{V_T+1}, s[{S_T+4}:{S_T+5}]')
    e(f'v_cndmask_b32 v{V_T+3}, v{V_T+5}, v{V_T+3}, s[{S_T+2}:{S_T+3}]')
    e(f'ds_read_b128 {vr(V_QB)}, v{V_T+2}')
    e(f'ds_read_b128 {vr(V_QB+4)}, v{V_T+3}')
    e(f'ds_read_b128 {vr(V_QB+8)}, v{V_T+4}')
    for i in range(12):
        e(f'v_mov_b32 v{V_O+i}, 0')
    e(f'v_mov_b32 v{V_L}, 0')
    e(f'v_mov_b32 v{V_M}, 0xff800000')
    e(f's_mov_b32 s{S_LOOP}, 0')
    e(f'v_mov_b32 v{V_BO}, 0')
    e('s_waitcnt lgkmcnt(0)')
    e(f's_cmp_eq_u32 s{S_GRP}, 0')
    e('s_cbranch_scc0 L_main_1')
    for gi in range(2):
        O.CURG = gi
        main_loop(g, gi)
    g.lab('L_fin')
    e('s_waitcnt vmcnt(0)')
    stamp(g, 3)
    e('s_nop 7')
    e('s_nop 3')
    e(f'v_add_f32_dpp v{V_L}, v{V_L}, v{V_L} row_ror:8 row_mask:0xf bank_mask:0xf')
    e('s_nop 1')
    e(f'v_readlane_b32 s{S_T}, v{V_L}, 0')
    e(f'v_readlane_b32 s{S_T+1}, v{V_L}, 16')
    e(f'v_readlane_b32 s{S_T+2}, v{V_L}, 32')
    e(f'v_readlane_b32 s{S_T+3}, v{V_L}, 48')
    e('s_nop 3')
    e(f'v_mov_b32 v{V_T+1}, s{S_T}')
    e(f'v_add_f32 v{V_T+1}, s{S_T+1}, v{V_T+1}')
    e(f'v_add_f32 v{V_T+1}, s{S_T+2}, v{V_T+1}')
    e(f'v_add_f32 v{V_T+1}, s{S_T+3}, v{V_T+1}')
    e(f'v_mov_b32 v{V_T}, v{V_M}')
    e(f's_mul_i32 s{S_T}, s{S_W}, 3328')
    e(f'v_lshlrev_b32 v{V_T+2}, 4, v{V_LANE}')
    e(f'v_add_u32 v{V_T+2}, s{S_T}, v{V_T+2}')
    for jj in range(3):
        e(f'ds_write_b128 v{V_T+2}, {vr(V_O+jj*4)} offset:{L_DA + jj*1024}')
    e(f'v_mov_b32 v{V_T+3}, s{S_T}')
    e(f'ds_write_b64 v{V_T+3}, v[{V_T}:{V_T+1}] offset:{L_DA + 3072}')
    Lg1 = g.uid('g1'); Lg2 = g.uid('g2')
    e(f's_cmp_eq_u32 s{S_GRP}, 0')
    e(f's_cbranch_scc0 {Lg1}')
    subbarrier(g, C_MERGE0)
    e(f's_branch {Lg2}')
    g.lab(Lg1)
    subbarrier(g, C_MERGE1)
    g.lab(Lg2)
    e(f's_mul_i32 s{S_T}, s{S_WI}, 48')
    e(f'v_add_u32 v{V_T}, s{S_T}, v{V_LANE}')
    e(f'v_min_u32 v{V_T}, 191, v{V_T}')
    raw_offsets(g, V_T, V_T+1, V_T+2, V_T+3, V_T+4)
    e(f's_mul_i32 s{S_T}, s{S_GRP}, {4*3328}')
    e(f'v_add_u32 v{V_T+1}, s{S_T}, v{V_T+1}')
    e(f'v_add_u32 v{V_T+2}, s{S_T}, v{V_T+2}')
    e(f'v_mov_b32 v{V_T+3}, s{S_T}')
    for wv in range(4):
        e(f'ds_read_b32 v{V_S+wv*2}, v{V_T+1} offset:{L_DA + wv*3328}')
        e(f'ds_read_b32 v{V_S+wv*2+1}, v{V_T+2} offset:{L_DA + wv*3328}')
        e(f'ds_read_b64 v[{V_PB+wv*2}:{V_PB+wv*2+1}], v{V_T+3} offset:{L_DA + wv*3328 + 3072}')
    e('s_waitcnt lgkmcnt(0)')
    e(f'v_max_f32 v{V_T+4}, v{V_PB}, v{V_PB+2}')
    e(f'v_max3_f32 v{V_T+4}, v{V_T+4}, v{V_PB+4}, v{V_PB+6}')
    for wv in range(4):
        e(f'v_sub_f32 v{V_PB+wv*2}, v{V_PB+wv*2}, v{V_T+4}')
        e(f'v_exp_f32 v{V_PB+wv*2}, v{V_PB+wv*2}')
        e(f'v_add_f32 v{V_S+wv*2}, v{V_S+wv*2}, v{V_S+wv*2+1}')
    e('s_nop 0')
    GA = V_TILE
    e(f'v_mul_f32 v{GA}, v{V_S}, v{V_PB}')
    e(f'v_mul_f32 v{V_T+6}, v{V_PB+1}, v{V_PB}')
    for wv in range(1, 4):
        e(f'v_fmac_f32 v{GA}, v{V_S+wv*2}, v{V_PB+wv*2}')
        e(f'v_fmac_f32 v{V_T+6}, v{V_PB+wv*2+1}, v{V_PB+wv*2}')
    e('s_nop 1')
    e(f'v_mov_b32_dpp v{GA+1}, v{GA} quad_perm:[1,0,3,2] row_mask:0xf bank_mask:0xf')
    e(f's_lshl_b32 s{S_T}, s{S_BH}, 2')
    e(f's_add_u32 s{S_T}, s{S_T}, s{S_QT}')
    e(f's_lshl_b32 s{S_T}, s{S_T}, 11')
    e(f'v_lshlrev_b32 v{V_T}, 3, v{V_T}')
    e(f'v_cmp_eq_u32 vcc, 48, v{V_LANE}')
    e(f'v_mov_b32 v{V_T+7}, {96*16}')
    e('s_nop 0')
    e(f'v_cndmask_b32 v{V_T}, v{V_T}, v{V_T+7}, vcc')
    e(f'v_cndmask_b32 v{GA}, v{GA}, v{V_T+4}, vcc')
    e(f'v_cndmask_b32 v{GA+1}, v{GA+1}, v{V_T+6}, vcc')
    e(f's_mov_b32 s{S_T+2}, 0x55555555')
    e(f's_mov_b32 s{S_T+3}, 0x00015555')
    e(f's_mov_b64 exec, s[{S_T+2}:{S_T+3}]')
    store_gran(g, GA, V_T, S_T, 0)
    e('s_mov_b64 exec, -1')
    stamp(g, 4)
    Lc = g.uid('cont')
    if O.NOSIDE:
        e('s_endpgm')
    e(f's_cmp_eq_u32 s{S_GRP}, 0')
    e(f's_cbranch_scc1 {Lc}')
    lds_inc(g, C_R1DONE)
    e('s_waitcnt lgkmcnt(0)')
    e('s_endpgm')
    g.lab(Lc)
    if O.SIDEMODE == 1:
        lds_wait(g, C_R1DONE, 4, sleep=2)
        e('s_endpgm')
    if O.SIDEMODE == 2:
        lds_wait(g, C_R1DONE, 4, sleep=64)
        e('s_endpgm')
    if O.SIDEMODE == 3:
        e(f's_cmp_eq_u32 s{S_ROLE}, 0')
        e('s_cbranch_scc0 L_end')
    if O.SIDEMODE == 5:
        e(f's_cmp_eq_u32 s{S_ROLE}, 0')
        e('s_cbranch_scc0 L_end')
    if O.SIDEMODE == 4:
        e(f's_cmp_eq_u32 s{S_ROLE}, 0')
        e('s_cbranch_scc1 L_end')
    if O.BAL2:
        Lng = g.uid('ng')
        e(f's_cmp_eq_u32 s{S_WI}, 0')
        e(f's_cbranch_scc0 {Lng}')
        e('s_memrealtime s[96:97]')
        e('s_waitcnt lgkmcnt(0)')
        e(f's_sub_u32 s97, s96, s{S_PROP}')
        GA2 = V_TILE + 8
        if O.SIDEB:
            e(f's_mov_b32 s{S_T}, 33')
            e(f's_cmp_eq_u32 s{S_ROLE}, 1')
            e(f's_cselect_b32 s{S_T}, 61, s{S_T}')
            e(f's_cmp_eq_u32 s{S_ROLE}, 2')
            e(f's_cselect_b32 s{S_T}, 27, s{S_T}')
            e(f's_mul_i32 s{S_T}, s{S_T}, s97')
            e(f's_lshr_b32 s{S_T}, s{S_T}, 10')
            e(f's_add_u32 s96, s96, s{S_T}')
        e(f'v_mov_b32 v{GA2}, s96')
        e(f'v_mov_b32 v{GA2+1}, s97')
        e(f's_lshl_b32 s{S_T}, s{S_QT}, 4')
        e(f's_add_u32 s{S_T+1}, s{S_BALO}, s{S_T}')
        e(f'v_mov_b32 v{V_T}, 0')
        e('s_mov_b64 exec, 1')
        store_gran(g, GA2, V_T, S_T+1, 0)
        e('s_mov_b64 exec, -1')
        e('s_nop 1')
        e(f'v_and_b32 v{V_T}, 3, v{V_LANE}')
        e(f'v_lshlrev_b32 v{V_T}, 4, v{V_T}')
        light_poll(g, V_T, S_BALO, 4, 16, GA2+4)
        e(f'buffer_load_dwordx4 {vr(GA2+4)}, v{V_T}, s[{R_WS}:{R_WS+3}], s{S_BALO} offen sc1')
        e('s_waitcnt vmcnt(0)')
        TJ = GA2 + 4; DJ = GA2 + 5
        e('s_nop 0')
        e(f'v_readlane_b32 s{S_T+3}, v{TJ}, 0')
        e('s_nop 3')
        e(f'v_subrev_u32 v{V_T+1}, s{S_T+3}, v{TJ}')
        e(f'v_cvt_f32_i32 v{V_T+1}, v{V_T+1}')
        e(f'v_cvt_f32_u32 v{V_T+2}, v{DJ}')
        e(f'v_rcp_f32 v{V_T+2}, v{V_T+2}')
        e('s_nop 0')
        e(f'v_mul_f32 v{V_T+2}, {f2u(32.0):#x}, v{V_T+2}')
        e(f'v_mul_f32 v{V_T+3}, v{V_T+1}, v{V_T+2}')
        e(f'v_mov_b32 v{V_T+4}, v{V_T+2}')
        e('s_nop 1')
        for pm in ('[1,0,3,2]', '[2,3,0,1]'):
            e(f'v_add_f32_dpp v{V_T+3}, v{V_T+3}, v{V_T+3} quad_perm:{pm} row_mask:0xf bank_mask:0xf')
            e(f'v_add_f32_dpp v{V_T+4}, v{V_T+4}, v{V_T+4} quad_perm:{pm} row_mask:0xf bank_mask:0xf')
            e('s_nop 1')
        e(f'v_add_f32 v{V_T+3}, {f2u(128.0):#x}, v{V_T+3}')
        e(f'v_rcp_f32 v{V_T+4}, v{V_T+4}')
        e('s_nop 0')
        e(f'v_mul_f32 v{V_T+3}, v{V_T+3}, v{V_T+4}')
        e(f'v_sub_f32 v{V_T+3}, v{V_T+3}, v{V_T+1}')
        e(f'v_mul_f32 v{V_T+3}, v{V_T+3}, v{V_T+2}')
        e(f'v_mul_f32 v{V_T+3}, {f2u(O.GAMMA):#x}, v{V_T+3}')
        e(f'v_add_f32 v{V_T+3}, {f2u(32.0*(1.0-O.GAMMA)):#x}, v{V_T+3}')
        e('s_nop 1')
        e(f'v_readlane_b32 s{S_T+3}, v{V_T+3}, 0')
        e(f'v_readlane_b32 s{S_T+4}, v{V_T+3}, 1')
        e(f'v_readlane_b32 s{S_T+5}, v{V_T+3}, 2')
        e('s_nop 3')
        e(f'v_mov_b32 v{V_T+1}, s{S_T+3}')
        e(f'v_add_f32 v{V_T+2}, s{S_T+4}, v{V_T+1}')
        e(f'v_add_f32 v{V_T+3}, s{S_T+5}, v{V_T+2}')
        for k in range(3):
            r = V_T + 1 + k
            e(f'v_add_f32 v{r}, 0.5, v{r}')
            e(f'v_max_f32 v{r}, {f2u(float(32*(k+1)-FLEX)):#x}, v{r}')
            e(f'v_min_f32 v{r}, {f2u(float(32*(k+1)+FLEX)):#x}, v{r}')
            e(f'v_cvt_u32_f32 v{r}, v{r}')
        e(f'v_lshl_or_b32 v{V_T+1}, v{V_T+2}, 8, v{V_T+1}')
        e(f'v_lshl_or_b32 v{V_T+1}, v{V_T+3}, 16, v{V_T+1}')
        e(f'v_mov_b32 v{V_T}, {L_MISC + C_SPLIT}')
        e(f'ds_write_b32 v{V_T}, v{V_T+1}')
        e('s_waitcnt lgkmcnt(0)')
        g.lab(Lng)
    g.c('gate for batch wi: lane handles k = 2*lane + 128*i')
    srd(g, R_W, S_GW, 1280)
    srd(g, R_X, S_X, 5120)
    e(f'v_lshlrev_b32 v{V_T}, 2, v{V_LANE}')
    e(f's_mul_i32 s{S_T}, s{S_WI}, 1280')
    for i in range(5):
        e(f'buffer_load_dword v{V_S+i}, v{V_T}, s[{R_W}:{R_W+3}], 0 offen offset:{i*256}')
        e(f'buffer_load_dword v{V_S+5+i}, v{V_T}, s[{R_X}:{R_X+3}], s{S_T} offen offset:{i*256}')
    e('s_waitcnt vmcnt(0)')
    e(f'v_mov_b32 v{V_T+4}, 0')
    for i in range(5):
        e(f'v_lshlrev_b32 v{V_T+5}, 16, v{V_S+i}')
        e(f'v_and_b32 v{V_T+6}, 0xffff0000, v{V_S+i}')
        e(f'v_lshlrev_b32 v{V_T+7}, 16, v{V_S+5+i}')
        e(f'v_and_b32 v{V_T+8}, 0xffff0000, v{V_S+5+i}')
        e(f'v_fmac_f32 v{V_T+4}, v{V_T+5}, v{V_T+7}')
        e(f'v_fmac_f32 v{V_T+4}, v{V_T+6}, v{V_T+8}')
    wave_sum(g, V_T+4, V_T+5, S_T)
    V_GATE = V_L
    e(f'v_mul_f32 v{V_T+4}, {f2u(-1.4426950408889634):#x}, v{V_T+4}')
    e(f'v_exp_f32 v{V_T+4}, v{V_T+4}')
    e('s_nop 0')
    e(f'v_add_f32 v{V_T+4}, 1.0, v{V_T+4}')
    e(f'v_rcp_f32 v{V_GATE}, v{V_T+4}')
    e('s_nop 0')
    TILE = V_TILE
    e(f's_cmp_eq_u32 s{S_ROLE}, 0')
    e('s_cbranch_scc0 L_ffn')
    srd(g, R_W, S_WO, WO_BYTES)
    e(f'v_mul_u32_u24 v{V_T}, 1280, v{V_G}')
    e(f'v_lshl_add_u32 v{V_T}, v{V_N}, 4, v{V_T}')
    e(f's_mul_i32 s{S_T}, s{S_H}, 192')
    e(f's_mul_i32 s{S_T+1}, s{S_WI}, 48')
    e(f's_add_u32 s{S_T}, s{S_T}, s{S_T+1}')
    e(f's_mul_i32 s{S_T}, s{S_T}, 1280')
    e(f's_lshl_b32 s{S_T+1}, s{S_CB}, 8')
    e(f's_add_u32 s{S_T}, s{S_T}, s{S_T+1}')
    for t in range(12):
        e(f'buffer_load_dwordx4 {vr(TILE+t*4)}, v{V_T}, s[{R_W}:{R_W+3}], s{S_T} offen {WPOL}')
        if t < 11:
            e(f's_add_u32 s{S_T}, s{S_T}, {4*1280}')
    lds_wait(g, C_R1DONE, 4, sleep=2)
    stamp(g, 5)
    if O.SIDEMODE == 3:
        e('s_endpgm')
    e(f's_lshl_b32 s{S_T}, s{S_WI}, 5')
    e(f's_add_u32 s{S_T}, s{S_T}, s{S_H}')
    e(f's_lshl_b32 s{S_T}, s{S_T}, 13')
    e(f's_add_u32 s{S_T+1}, s{S_T}, 4096')
    e(f'v_lshlrev_b32 v{V_T}, 4, v{V_LANE}')
    e(f'v_min_u32 v{V_T+1}, 31, v{V_LANE}')
    e(f'v_lshlrev_b32 v{V_T+1}, 4, v{V_T+1}')
    e(f'v_add_u32 v{V_T+1}, 1024, v{V_T+1}')
    e(f'v_mov_b32 v{V_T+2}, {96*16}')
    PG = V_TILE + 48
    if O.QPOLL == 0:
        e(f'v_lshlrev_b32 v{V_T+3}, 11, v{V_LANE}')
        e(f'v_add_u32 v{V_T+3}, {96*16}, v{V_T+3}')
        light_poll(g, V_T+3, S_T, 4, 2, PG)
        Lp = g.uid('pp'); Lpd = g.uid('ppd')
        spin_init(g)
        g.lab(Lp)
        for qt in range(4):
            for j in range(3):
                e(f'buffer_load_dwordx4 {vr(PG+(qt*3+j)*4)}, v{V_T+j}, s[{R_WS}:{R_WS+3}], s{S_T + (qt>>1)} offen offset:{(qt&1)*2048} sc1')
        e('s_waitcnt vmcnt(0)')
        tag_check(g, [PG+k*4 for k in range(12)], V_T+3, V_T+4)
        e(f'v_cmp_ne_u32 vcc, 0, v{V_T+3}')
        e(f's_cbranch_vccz {Lpd}')
        spin_guard(g, Lpd)
        e('s_sleep 2')
        e(f's_branch {Lp}')
    else:
        for qt in range(4):
            for j in range(3):
                e(f'buffer_load_dwordx4 {vr(PG+(qt*3+j)*4)}, v{V_T+j}, s[{R_WS}:{R_WS+3}], s{S_T + (qt>>1)} offen offset:{(qt&1)*2048} sc1')
        e('s_waitcnt vmcnt(0)')
        for qt in range(4):
            lq = g.uid('pq'); lqd = g.uid('pqd')
            spin_init(g)
            g.lab(lq)
            tag_check(g, [PG+(qt*3+k)*4 for k in range(3)], V_T+3, V_T+4)
            e(f'v_cmp_ne_u32 vcc, 0, v{V_T+3}')
            e(f's_cbranch_vccz {lqd}')
            spin_guard(g, lqd)
            e(f's_sleep {O.QPOLL}')
            for j in range(3):
                e(f'buffer_load_dwordx4 {vr(PG+(qt*3+j)*4)}, v{V_T+j}, s[{R_WS}:{R_WS+3}], s{S_T + (qt>>1)} offen offset:{(qt&1)*2048} sc1')
            e('s_waitcnt vmcnt(0)')
            e(f's_branch {lq}')
            g.lab(lqd)
        Lpd = g.uid('ppd')
    g.lab(Lpd)
    stamp(g, 6)
    if O.SIDEMODE == 5:
        e('s_endpgm')
    def PM(qt): return PG + (qt*3+2)*4
    def PO(qt, j): return PG + (qt*3+j)*4
    e(f'v_max_f32 v{V_T+2}, v{PM(0)}, v{PM(1)}')
    e(f'v_max3_f32 v{V_T+2}, v{V_T+2}, v{PM(2)}, v{PM(3)}')
    for qt in range(4):
        e(f'v_sub_f32 v{PM(qt)}, v{PM(qt)}, v{V_T+2}')
        e(f'v_exp_f32 v{PM(qt)}, v{PM(qt)}')
    e('s_nop 0')
    e(f'v_mul_f32 v{V_T+3}, v{PM(0)+1}, v{PM(0)}')
    for qt in range(1, 4):
        e(f'v_fmac_f32 v{V_T+3}, v{PM(qt)+1}, v{PM(qt)}')
    e(f'v_rcp_f32 v{V_T+3}, v{V_T+3}')
    for j in range(2):
        for el in range(2):
            dst = V_T + 4 + j*2 + el
            e(f'v_mul_f32 v{dst}, v{PO(0,j)+el}, v{PM(0)}')
            for qt in range(1, 4):
                e(f'v_fmac_f32 v{dst}, v{PO(qt,j)+el}, v{PM(qt)}')
    for k in range(4):
        e(f'v_mul_f32 v{V_T+4+k}, v{V_T+4+k}, v{V_T+3}')
    e('s_branch L_od')
    g.lab('L_ffn')
    e(f'v_mul_u32_u24 v{V_T}, 3072, v{V_G}')
    e(f'v_lshl_add_u32 v{V_T}, v{V_N}, 4, v{V_T}')
    e(f's_mul_i32 s{S_T+2}, s{S_S1}, 80')
    e(f's_mul_i32 s{S_T+1}, s{S_WI}, 20')
    e(f's_add_u32 s{S_T+2}, s{S_T+2}, s{S_T+1}')
    e(f's_mul_i32 s{S_T}, s{S_T+2}, 3072')
    e(f's_lshl_b32 s{S_T+1}, s{S_C1}, 8')
    e(f's_add_u32 s{S_T}, s{S_T}, s{S_T+1}')
    FA = V_TILE + 48
    srd(g, R_W, S_WGATE, WG_BYTES)
    for t in range(5):
        e(f'buffer_load_dwordx4 {vr(FA+t*4)}, v{V_T}, s[{R_W}:{R_W+3}], s{S_T} offen {WPOL}')
        e(f's_add_u32 s{S_T}, s{S_T}, {4*3072}')
    e(f's_sub_u32 s{S_T}, s{S_T}, {20*3072}')
    srd(g, R_G, S_WUP, WG_BYTES)
    for t in range(5):
        e(f'buffer_load_dwordx4 {vr(FA+20+t*4)}, v{V_T}, s[{R_G}:{R_G+3}], s{S_T} offen {WPOL}')
        e(f's_add_u32 s{S_T}, s{S_T}, {4*3072}')
    XF = V_TILE + 96
    e(f'v_lshrrev_b32 v{V_T+1}, 3, v{V_N}')
    e(f'v_mul_u32_u24 v{V_T+1}, 640, v{V_T+1}')
    e(f'v_add_lshl_u32 v{V_T+1}, v{V_T+1}, v{V_G}, 1')
    e(f's_lshl_b32 s{S_T+1}, s{S_T+2}, 1')
    for t in range(5):
        for P in range(2):
            e(f'buffer_load_ushort v{XF + t*2 + P}, v{V_T+1}, s[{R_X}:{R_X+3}], s{S_T+1} offen offset:{t*8 + P*2560}')
    Lnd = g.uid('nd')
    e(f's_cmp_eq_u32 s{S_ROLE}, 1')
    e(f's_cbranch_scc0 {Lnd}')
    srd(g, R_W, S_WDOWN, WD_BYTES)
    e(f'v_mul_u32_u24 v{V_T+1}, 1280, v{V_G}')
    e(f'v_lshl_add_u32 v{V_T+1}, v{V_N}, 4, v{V_T+1}')
    e(f's_mul_i32 s{S_T}, s{S_S1}, 192')
    e(f's_mul_i32 s{S_T+1}, s{S_WI}, 48')
    e(f's_add_u32 s{S_T}, s{S_T}, s{S_T+1}')
    e(f's_mul_i32 s{S_T}, s{S_T}, 1280')
    e(f's_lshl_b32 s{S_T+1}, s{S_CB}, 8')
    e(f's_add_u32 s{S_T}, s{S_T}, s{S_T+1}')
    for t in range(12):
        e(f'buffer_load_dwordx4 {vr(TILE+t*4)}, v{V_T+1}, s[{R_W}:{R_W+3}], s{S_T} offen {WPOL}')
        if t < 11:
            e(f's_add_u32 s{S_T}, s{S_T}, {4*1280}')
    g.lab(Lnd)
    e('s_waitcnt vmcnt(0)')
    for k in range(10):
        e(f'v_lshl_or_b32 v{XF+k}, v{XF+k}, 16, v{XF+k}')
    FD = V_O
    for t in range(5):
        for P in range(2):
            for i in range(4):
                e(f'v_and_b32 v{V_PB + P*4 + i}, v{XF + t*2 + P}, v{V_MASK+i}')
        e('s_nop 1')
        for mat in range(2):
            for P in range(2):
                dd = FD + (mat*2+P)*4
                cc = '0' if t == 0 else vr(dd)
                e(f'v_mfma_f32_16x16x32_bf16 {vr(dd)}, {vr(FA + mat*20 + t*4)}, {vr(V_PB+P*4)}, {cc}')
    e('s_nop 7')
    e('s_nop 3')
    e(f's_lshl_b32 s{S_T}, s{S_WI}, 12')
    e(f'v_lshlrev_b32 v{V_T}, 4, v{V_LANE}')
    e(f'v_add_u32 v{V_T}, s{S_T}, v{V_T}')
    for k in range(4):
        e(f'ds_write_b128 v{V_T}, {vr(FD+k*4)} offset:{L_DP + k*1024}')
    subbarrier(g, C_SB3)
    pair_offset(g, V_T)
    for mat in range(2):
        for el in range(2):
            for wv in range(4):
                e(f'ds_read_b32 v{V_S + (mat*2+el)*4 + wv}, v{V_T} offset:{L_DP + wv*4096 + mat*2048 + el*16}')
    e('s_waitcnt lgkmcnt(0)')
    e(f's_lshl_b32 s{S_T}, s{S_C1}, 3')
    e(f's_add_u32 s{S_T}, s{S_T}, s{S_S1}')
    e(f's_lshl_b32 s{S_T}, s{S_T}, 13')
    e(f's_lshl_b32 s{S_T+1}, s{S_WI}, 10')
    e(f's_add_u32 s{S_T}, s{S_T}, s{S_T+1}')
    e(f's_add_u32 s{S_T}, s{S_T}, {WS_F1}')
    e(f'v_lshlrev_b32 v{V_T+1}, 4, v{V_LANE}')
    for mat in range(2):
        ga = V_TILE + 48 + mat*4
        for el in range(2):
            b = V_S + (mat*2+el)*4
            e(f'v_add_f32 v{b}, v{b}, v{b+1}')
            e(f'v_add_f32 v{b+2}, v{b+2}, v{b+3}')
            e(f'v_add_f32 v{ga+el}, v{b}, v{b+2}')
        e(f's_add_u32 s{S_T+1}, s{S_T}, {mat*4096}')
        store_gran(g, ga, V_T+1, S_T+1, 0)
    e(f's_cmp_eq_u32 s{S_ROLE}, 1')
    e('s_cbranch_scc0 L_end')
    e('s_nop 1')
    HG = V_TILE + 48
    Lh = g.uid('hp'); Lhd = g.uid('hpd')
    for jj in range(3):
        e(f's_mul_i32 s{S_T+4+jj}, s{S_S1}, 192')
        e(f's_add_u32 s{S_T+4+jj}, s{S_T+4+jj}, {64*jj}')
        e(f's_lshr_b32 s{S_T+1}, s{S_T+4+jj}, 7')
        e(f's_and_b32 s{S_T+4+jj}, s{S_T+4+jj}, 127')
        e(f's_lshl_b32 s{S_T+4+jj}, s{S_T+4+jj}, 3')
        e(f's_lshl_b32 s{S_T+1}, s{S_T+1}, 16')
        e(f's_add_u32 s{S_T+4+jj}, s{S_T+4+jj}, s{S_T+1}')
    e(f'v_and_b32 v{V_T}, 31, v{V_LANE}')
    e(f'v_lshlrev_b32 v{V_T}, 4, v{V_T}')
    e(f'v_mov_b32 v{V_T+1}, s{S_T+4}')
    e(f'v_mov_b32 v{V_T+2}, s{S_T+5}')
    e(f'v_cmp_gt_u32 vcc, 32, v{V_LANE}')
    e('s_nop 1')
    e(f'v_cndmask_b32 v{V_T+1}, v{V_T+2}, v{V_T+1}, vcc')
    e(f'v_add_u32 v{V_T+1}, v{V_T+1}, v{V_T}')
    e(f'v_add_u32 v{V_T+2}, s{S_T+6}, v{V_T}')
    e(f's_lshl_b32 s{S_T}, s{S_WI}, 10')
    e(f's_add_u32 s{S_T}, s{S_T}, {WS_F1}')
    e(f's_mul_i32 s{S_T+1}, s{S_S1}, 192')
    e(f's_lshr_b32 s{S_T+1}, s{S_T+1}, 7')
    e(f's_lshl_b32 s{S_T+1}, s{S_T+1}, 16')
    e(f'v_lshlrev_b32 v{V_T+3}, 13, v{V_LANE}')
    e(f'v_add_u32 v{V_T+3}, s{S_T+1}, v{V_T+3}')
    light_poll(g, V_T+3, S_T, 16, 32, HG)
    spin_init(g)
    g.lab(Lh)
    e(f's_mov_b32 s{S_T+1}, s{S_T}')
    for s in range(8):
        for mat in range(2):
            e(f's_add_u32 s{S_T+2}, s{S_T+1}, {mat*4096}')
            for ab in range(2):
                e(f'buffer_load_dwordx4 {vr(HG + ((ab*2+mat)*8+s)*4)}, v{V_T+1+ab}, s[{R_WS}:{R_WS+3}], s{S_T+2} offen sc1')
        if s < 7:
            e(f's_add_u32 s{S_T+1}, s{S_T+1}, 8192')
    e('s_waitcnt vmcnt(0)')
    tag_check(g, [HG+k*4 for k in range(32)], V_T+3, V_T+4)
    e(f'v_cmp_ne_u32 vcc, 0, v{V_T+3}')
    e(f's_cbranch_vccz {Lhd}')
    spin_guard(g, Lhd)
    e('s_sleep 16')
    e(f's_branch {Lh}')
    g.lab(Lhd)
    for ab in range(2):
        for el in range(2):
            for mat in range(2):
                b = HG + ((ab*2+mat)*8)*4 + el
                for s in range(1, 8):
                    e(f'v_add_f32 v{b}, v{b}, v{b+s*4}')
            gg = HG + ((ab*2+0)*8)*4 + el; uu = HG + ((ab*2+1)*8)*4 + el
            e(f'v_mul_f32 v{V_T+2}, v{gg}, v{gg}')
            e(f'v_mul_f32 v{V_T+2}, {f2u(0.044715):#x}, v{V_T+2}')
            e(f'v_add_f32 v{V_T+2}, 1.0, v{V_T+2}')
            e(f'v_mul_f32 v{V_T+2}, v{V_T+2}, v{gg}')
            e(f'v_mul_f32 v{V_T+2}, {f2u(-2.0*0.7978845608028654*1.4426950408889634):#x}, v{V_T+2}')
            e(f'v_exp_f32 v{V_T+2}, v{V_T+2}')
            e('s_nop 0')
            e(f'v_add_f32 v{V_T+2}, 1.0, v{V_T+2}')
            e(f'v_rcp_f32 v{V_T+2}, v{V_T+2}')
            e('s_nop 0')
            e(f'v_mul_f32 v{V_T+2}, v{V_T+2}, v{gg}')
            e(f'v_mul_f32 v{V_T+4+ab*2+el}, v{V_T+2}, v{uu}')
    e(f'v_sub_f32 v{V_GATE}, 1.0, v{V_GATE}')
    g.lab('L_od')
    e(f's_mul_i32 s{S_T}, s{S_WI}, 768')
    e(f'v_lshlrev_b32 v{V_T}, 3, v{V_LANE}')
    e(f'v_add_u32 v{V_T}, s{S_T}, v{V_T}')
    for k in range(4):
        e(f'v_cvt_pk_bf16_f32 v{V_T+4+k}, v{V_T+4+k}, v{V_T+4+k}')
    e(f'ds_write_b64 v{V_T}, v[{V_T+4}:{V_T+5}] offset:{L_OD}')
    e('s_mov_b32 exec_hi, 0')
    e(f'ds_write_b64 v{V_T}, v[{V_T+6}:{V_T+7}] offset:{L_OD + 512}')
    e('s_mov_b64 exec, -1')
    subbarrier(g, C_SB1)
    e(f'v_lshrrev_b32 v{V_T}, 3, v{V_N}')
    e(f'v_mul_u32_u24 v{V_T}, 192, v{V_T}')
    e(f'v_add_u32 v{V_T}, v{V_T}, v{V_G}')
    e(f's_mul_i32 s{S_T}, s{S_WI}, 48')
    e(f'v_add_u32 v{V_T}, s{S_T}, v{V_T}')
    e(f'v_lshlrev_b32 v{V_T}, 2, v{V_T}')
    BV = V_TILE + 96
    for t in range(12):
        for P in range(2):
            e(f'ds_read_b32 v{BV + t*2 + P}, v{V_T} offset:{L_OD + t*16 + P*1536}')
    e('s_waitcnt vmcnt(0) lgkmcnt(0)')
    PD = V_O
    for t in range(12):
        for P in range(2):
            for i in range(4):
                e(f'v_and_b32 v{V_QB + (t&1)*8 + P*4 + i}, v{BV + t*2 + P}, v{V_MASK+i}')
        e('s_nop 1')
        for P in range(2):
            dd = PD + P*4
            cc = '0' if t == 0 else vr(dd)
            e(f'v_mfma_f32_16x16x32_bf16 {vr(dd)}, {vr(TILE + t*4)}, {vr(V_QB + (t&1)*8 + P*4)}, {cc}')
    e('s_nop 7')
    e('s_nop 3')
    e(f's_lshl_b32 s{S_T}, s{S_WI}, 11')
    e(f'v_lshlrev_b32 v{V_T}, 4, v{V_LANE}')
    e(f'v_add_u32 v{V_T}, s{S_T}, v{V_T}')
    for P in range(2):
        e(f'ds_write_b128 v{V_T}, {vr(PD+P*4)} offset:{L_DP2 + P*1024}')
    subbarrier(g, C_SB2)
    pair_offset(g, V_T)
    for el in range(2):
        for wv in range(4):
            e(f'ds_read_b32 v{V_S + el*4 + wv}, v{V_T} offset:{L_DP2 + wv*2048 + el*16}')
    e('s_waitcnt lgkmcnt(0)')
    e(f's_mul_i32 s{S_T}, s{S_CB}, 40')
    e(f's_add_u32 s{S_T}, s{S_T}, s{S_SRC}')
    e(f's_lshl_b32 s{S_T}, s{S_T}, 12')
    e(f's_lshl_b32 s{S_T+1}, s{S_WI}, 10')
    e(f's_add_u32 s{S_T}, s{S_T}, s{S_T+1}')
    e(f's_add_u32 s{S_T}, s{S_T}, {WS_OUTP}')
    e(f'v_lshlrev_b32 v{V_T+1}, 4, v{V_LANE}')
    ga = V_TILE + 48
    for el in range(2):
        b = V_S + el*4
        e(f'v_add_f32 v{b}, v{b}, v{b+1}')
        e(f'v_add_f32 v{b+2}, v{b+2}, v{b+3}')
        e(f'v_add_f32 v{b}, v{b}, v{b+2}')
        e(f'v_mul_f32 v{ga+el}, v{b}, v{V_GATE}')
    store_gran(g, ga, V_T+1, S_T, 0)
    e(f's_cmp_eq_u32 s{S_ROLE}, 0')
    e('s_cbranch_scc0 L_end')
    e(f's_cmp_eq_u32 s{S_WI}, 0')
    e('s_cbranch_scc0 L_end')
    if O.SIDEMODE == 6:
        e('s_endpgm')
    e(f's_lshr_b32 s{S_T}, s{S_H}, 3')
    e(f's_and_b32 s{S_T+1}, s{S_H}, 7')
    e(f's_mul_i32 s{S_T+2}, s{S_CB}, {40*4096}')
    e(f's_lshl_b32 s{S_T+3}, s{S_T}, 10')
    e(f's_add_u32 s{S_T+2}, s{S_T+2}, s{S_T+3}')
    e(f's_lshl_b32 s{S_T+3}, s{S_T+1}, 7')
    e(f's_add_u32 s{S_T+2}, s{S_T+2}, s{S_T+3}')
    e(f's_add_u32 s{S_T+2}, s{S_T+2}, {WS_OUTP}')
    e(f'v_lshrrev_b32 v{V_T}, 3, v{V_LANE}')
    e(f'v_lshlrev_b32 v{V_T}, 12, v{V_T}')
    e(f'v_and_b32 v{V_T+1}, 7, v{V_LANE}')
    e(f'v_lshl_add_u32 v{V_T}, v{V_T+1}, 4, v{V_T}')
    Lf = g.uid('fp'); Lfd = g.uid('fpd')
    FR = V_TILE + 64
    spin_init(g)
    g.lab(Lf)
    e(f's_mov_b32 s{S_T+4}, s{S_T+2}')
    for k in range(5):
        e(f'buffer_load_dwordx4 {vr(FR+k*4)}, v{V_T}, s[{R_WS}:{R_WS+3}], s{S_T+4} offen sc1')
        if k < 4:
            e(f's_add_u32 s{S_T+4}, s{S_T+4}, {8*4096}')
    e('s_waitcnt vmcnt(0)')
    tag_check(g, [FR+k*4 for k in range(5)], V_T+2, V_T+3)
    e(f'v_cmp_ne_u32 vcc, 0, v{V_T+2}')
    e(f's_cbranch_vccz {Lfd}')
    spin_guard(g, Lfd)
    e('s_sleep 1')
    e(f's_branch {Lf}')
    g.lab(Lfd)
    for k in range(1, 5):
        e(f'v_add_f32 v{FR}, v{FR}, v{FR+k*4}')
        e(f'v_add_f32 v{FR+1}, v{FR+1}, v{FR+k*4+1}')
    for xm in (8, 16, 32):
        e(f'v_xor_b32 v{V_T+2}, {xm}, v{V_LANE}')
        e(f'v_lshlrev_b32 v{V_T+2}, 2, v{V_T+2}')
        e(f'ds_bpermute_b32 v{V_T+3}, v{V_T+2}, v{FR}')
        e(f'ds_bpermute_b32 v{V_T+4}, v{V_T+2}, v{FR+1}')
        e('s_waitcnt lgkmcnt(0)')
        e(f'v_add_f32 v{FR}, v{FR}, v{V_T+3}')
        e(f'v_add_f32 v{FR+1}, v{FR+1}, v{V_T+4}')
    e(f'v_cvt_pk_bf16_f32 v{FR}, v{FR}, v{FR+1}')
    srd(g, R_W, S_OUT, 5120)
    e(f's_mul_i32 s{S_T}, s{S_T}, 640')
    e(f's_lshl_b32 s{S_T+3}, s{S_CB}, 7')
    e(f's_add_u32 s{S_T}, s{S_T}, s{S_T+3}')
    e(f's_lshl_b32 s{S_T+1}, s{S_T+1}, 4')
    e(f's_add_u32 s{S_T}, s{S_T}, s{S_T+1}')
    e(f's_lshl_b32 s{S_T}, s{S_T}, 1')
    e(f'v_lshlrev_b32 v{V_T}, 2, v{V_LANE}')
    e('s_mov_b64 exec, 0xff')
    e(f'buffer_store_dword v{FR}, v{V_T}, s[{R_W}:{R_W+3}], s{S_T} offen')
    e('s_mov_b64 exec, -1')
    stamp(g, 7)
    e(f's_cmp_eq_u32 s2, 0')
    e('s_cbranch_scc0 L_end')
    e(f'v_mov_b32 v{V_T}, s{S_TAG}')
    e(f'v_mov_b32 v{V_T+1}, s{S_TAG+1}')
    e(f'v_mov_b32 v{V_T+2}, {WS_EPOCH}')
    e('s_mov_b64 exec, 1')
    e(f'buffer_store_dwordx2 v[{V_T}:{V_T+1}], v{V_T+2}, s[{R_WS}:{R_WS+3}], 0 offen sc1')
    g.lab('L_end')
    e('s_endpgm')
    return g


HEADER = open('gated_mix__mha_block_cached__glu_gated_geglu__decode.s.ref').read().split('\n')

def emit(path):
    g = build()
    out = []
    for line in HEADER:
        if line.startswith('; @launch'):
            out.append(f'; @launch grid=(256,1,1) block=(512,1,1) lds={LDS_BYTES}')
            continue
        out.append(line)
        if line.startswith(NAME + ':'):
            break
    out += g.L
    out += ['.section .rodata,"a"', '.p2align 6', f'.amdhsa_kernel {NAME}',
            '  .amdhsa_next_free_vgpr 256', '  .amdhsa_next_free_sgpr 102', '  .amdhsa_accum_offset 256',
            '  .amdhsa_group_segment_fixed_size 0', '  .amdhsa_kernarg_size 104', '  .amdhsa_user_sgpr_count 2',
            '  .amdhsa_user_sgpr_kernarg_segment_ptr 1', '  .amdhsa_system_sgpr_workgroup_id_x 1', '.end_amdhsa_kernel']
    open(path, 'w').write('\n'.join(out) + '\n')

if __name__ == '__main__':
    args = sys.argv[1:]
    path = 'gated_mix__mha_block_cached__glu_gated_geglu__decode.s'
    for a in args:
        if a == '--ts': O.TS = True
        elif a.startswith('--D='): O.D = int(a[4:])
        elif a.startswith('--pace='): O.PACE = int(a[7:])
        elif a == '--noprio': O.PRIO = False
        elif a == '--noq': O.NOQ = True
        elif a == '--nobal': O.BAL2 = False
        elif a == '--nopipe': O.PIPE = False
        elif a == '--nosideb': O.SIDEB = False
        elif a.startswith('--gamma='): O.GAMMA = float(a[8:])
        elif a.startswith('--flex='): globals().__setitem__('FLEX', int(a[7:]))
        elif a.startswith('--qval='): O.QVAL = int(a[7:],16)
        elif a.startswith('--delayq='): O.DELAYQ = int(a[9:])
        elif a.startswith('--delay='): O.DELAY = int(a[8:])
        elif a == '--warm': O.WARM = True
        elif a.startswith('--qpoll='): O.QPOLL = int(a[8:])
        elif a == '--nostore': O.NOSTORE = True
        elif a.startswith('--pevery='): O.PEVERY = int(a[9:])
        elif a.startswith('--balmode='): O.BALMODE = int(a[10:])
        elif a.startswith('--kpol='): O.KPOL = [x.replace('_',' ') for x in a[7:].split(',')]
        elif a.startswith('--vpol='): O.VPOL = [x.replace('_',' ') for x in a[7:].split(',')]
        elif a == '--dts': O.DTS = True
        elif a.startswith('--side='): O.SIDEMODE = int(a[7:])
        elif a == '--noside': O.NOSIDE = True
        elif a == '--nocomp': O.NOCOMP = True
        else: path = a
    emit(path)
    print('LDS', LDS_BYTES, 'used', LDS_USED)
```

```python
import sys
def gen(name, pattern='contig', W=4, D=4, pol='', nwg=256, TK=16, mapping='half', dma=False, ts=False, padv=0):
    tb = TK*384
    nl = tb//1024
    keys_per_wg = 128*8192//nwg
    tiles_per_wave = keys_per_wg//TK//W
    L=[]
    A=L.append
    A(f'.amdgcn_target "amdgcn-amd-amdhsa--gfx950"')
    A('.text')
    A(f'.globl {name}')
    A('.p2align 8')
    A(f'.type {name},@function')
    A(f'{name}:')
    A(f'  s_cmp_ge_u32 s2, {nwg}')
    A(f'  s_cbranch_scc1 L_done_{name}')
    A('  s_load_dwordx4 s[4:7], s[0:1], 0')
    if ts: A('  s_memrealtime s[28:29]')
    A('  s_waitcnt lgkmcnt(0)')
    A('  s_mov_b32 s8, s4'); A('  s_and_b32 s9, s5, 0xffff'); A('  s_mov_b32 s10, 402653184'); A('  s_mov_b32 s11, 0x20000')
    A('  s_mov_b32 s12, s6'); A('  s_and_b32 s13, s7, 0xffff'); A('  s_mov_b32 s14, 402653184'); A('  s_mov_b32 s15, 0x20000')
    A('  v_lshrrev_b32 v1, 6, v0')
    A('  v_and_b32 v2, 63, v0')
    A('  s_nop 0')
    A('  v_readfirstlane_b32 s16, v1')
    if mapping=='half':
        A(f'  s_mul_i32 s17, s2, {keys_per_wg*384}')
    elif mapping=='xcd':
        A(f'  s_and_b32 s18, s2, 7')
        A(f'  s_lshr_b32 s19, s2, 3')
        A(f'  s_mul_i32 s18, s18, {nwg//8}')
        A(f'  s_add_u32 s18, s18, s19')
        A(f'  s_mul_i32 s17, s18, {keys_per_wg*384}')
    A(f'  s_mul_i32 s18, s16, {tb}')
    A('  s_add_u32 s17, s17, s18')
    if pattern=='contig':
        A('  v_lshlrev_b32 v3, 4, v2')
        A('  v_add_u32 v4, 4096, v3')
        A('  v_mov_b32 v5, v3'); A('  v_mov_b32 v6, v4')
        koffs=[('v3',j*1024) if j<4 else ('v4',(j-4)*1024) for j in range(nl)]
        voffs=[('v5',j*1024) if j<4 else ('v6',(j-4)*1024) for j in range(nl)]
        assert nl<=8
    elif pattern=='mf':
        A('  v_and_b32 v7, 3, v2')
        A('  v_bfe_u32 v8, v2, 2, 2')
        A('  v_lshrrev_b32 v9, 4, v2')
        A('  v_lshlrev_b32 v3, 4, v7')
        A('  v_mul_u32_u24 v8, 768, v8')
        A('  v_add_u32 v3, v3, v8')
        A('  v_lshlrev_b32 v10, 6, v9')
        A('  v_add_u32 v3, v3, v10')
        A('  v_add_u32 v4, 6144, v3')
        A('  v_and_b32 v7, 15, v2')
        A('  v_lshlrev_b32 v5, 4, v7')
        A('  v_mul_u32_u24 v9, 768, v9')
        A('  v_add_u32 v5, v5, v9')
        A('  v_add_u32 v6, 6144, v5')
        offs=[]
        for grp in range(TK//8):
            for jj in range(3):
                o=grp*3072+jj*256
                offs.append(o)
        koffs=[('v3',o) if o<4096 else ('v4',o-6144) for o in offs]
        voffs=[('v5',o) if o<4096 else ('v6',o-6144) for o in offs]
        for r,o in koffs: assert 0<=o<4096
    elif pattern=='nat':
        A('  v_and_b32 v7, 15, v2')
        A('  v_lshrrev_b32 v9, 4, v2')
        A('  v_mul_u32_u24 v3, 384, v7')
        A('  v_lshlrev_b32 v10, 4, v9')
        A('  v_add_u32 v3, v3, v10')
        A('  v_add_u32 v4, 6144, v3')
        A('  v_lshlrev_b32 v5, 4, v7')
        A('  v_mul_u32_u24 v9, 768, v9')
        A('  v_add_u32 v5, v5, v9')
        A('  v_add_u32 v6, 6144, v5')
        koffs=[]
        for grp in range(TK//16):
            for j in range(6):
                koffs.append(('v3' if grp==0 else 'v4', j*64))
        offs=[]
        for grp in range(TK//8):
            for jj in range(3):
                offs.append(grp*3072+jj*256)
        voffs=[('v5',o) if o<4096 else ('v6',o-6144) for o in offs]
    base=12
    def regs(d,i):
        r=base+(d*2*nl+i)*4
        return r
    nv=max(base+D*2*nl*4, padv)
    if dma:
        nv=16
        A(f'  s_mul_i32 s22, s16, {D*2*tb}')
    def issue(d):
        for i,(r,o) in enumerate(koffs):
            if dma:
                A(f'  s_add_u32 m0, s22, {d*2*tb+i*1024}')
                A('  s_nop 0')
                A(f'  buffer_load_dwordx4 {r}, s[8:11], s17 offen offset:{o} lds {pol}') if o==0 else None
                assert False
            rr=regs(d,i)
            A(f'  buffer_load_dwordx4 v[{rr}:{rr+3}], {r}, s[8:11], s17 offen offset:{o} {pol}')
        for i,(r,o) in enumerate(voffs):
            rr=regs(d,nl+i)
            A(f'  buffer_load_dwordx4 v[{rr}:{rr+3}], {r}, s[12:15], s17 offen offset:{o} {pol}')
        A(f'  s_add_u32 s17, s17, {tb*W}')
    for d in range(D):
        issue(d)
    A(f'  s_mov_b32 s20, {tiles_per_wave//D - 1}')
    A(f'L_loop_{name}:')
    for d in range(D):
        A(f'  s_waitcnt vmcnt({min(63,(D-1)*2*nl)})')
        for i in range(2*nl):
            rr=regs(d,i)
            A(f'  v_xor_b32 v11, v11, v{rr}')
        issue(d)
    A('  s_sub_u32 s20, s20, 1')
    A('  s_cmp_lg_u32 s20, 0')
    A(f'  s_cbranch_scc1 L_loop_{name}')
    A('  s_waitcnt vmcnt(0)')
    for d in range(D):
        for i in range(2*nl):
            rr=regs(d,i)
            A(f'  v_xor_b32 v11, v11, v{rr}')
    if ts:
        A('  s_memrealtime s[30:31]')
        A('  s_getreg_b32 s24, hwreg(HW_REG_XCC_ID)')
        A('  s_getreg_b32 s25, hwreg(HW_REG_HW_ID)')
        A('  s_load_dwordx2 s[26:27], s[0:1], 16')
        A('  s_waitcnt lgkmcnt(0)')
        A(f'  s_mul_i32 s21, s2, {W}')
        A('  s_add_u32 s21, s21, s16')
        A('  s_lshl_b32 s21, s21, 5')
        A('  v_mov_b32 v1, s21')
        A('  v_mov_b32 v4, s28'); A('  v_mov_b32 v5, s29'); A('  v_mov_b32 v6, s30'); A('  v_mov_b32 v7, s31')
        A('  global_store_dwordx4 v1, v[4:7], s[26:27]')
        A('  s_nop 3')
        A('  v_mov_b32 v4, s24'); A('  v_mov_b32 v5, s25'); A('  v_mov_b32 v6, v11'); A('  v_mov_b32 v7, 0')
        A('  global_store_dwordx4 v1, v[4:7], s[26:27] offset:16')
        A('  s_endpgm')
    A('  v_cmp_eq_u32 vcc, 0x12345678, v11')
    A('  s_and_saveexec_b64 s[24:25], vcc')
    A(f'  s_cbranch_execz L_done_{name}')
    A('  s_load_dwordx2 s[26:27], s[0:1], 16')
    A('  s_waitcnt lgkmcnt(0)')
    A('  v_mov_b32 v1, 0')
    A('  global_store_dword v1, v11, s[26:27]')
    A(f'L_done_{name}:')
    A('  s_endpgm')
    A('.section .rodata,"a"')
    A('.p2align 6')
    A(f'.amdhsa_kernel {name}')
    A(f'  .amdhsa_next_free_vgpr {nv}')
    A('  .amdhsa_next_free_sgpr 40')
    A(f'  .amdhsa_accum_offset {(nv+3)//4*4}')
    A('  .amdhsa_group_segment_fixed_size 0')
    A('  .amdhsa_kernarg_size 24')
    A('  .amdhsa_user_sgpr_count 2')
    A('  .amdhsa_user_sgpr_kernarg_segment_ptr 1')
    A('  .amdhsa_system_sgpr_workgroup_id_x 1')
    A('.end_amdhsa_kernel')
    A('.text')
    return L, nv
def meta(kernels):
    L=['.amdgpu_metadata','---','amdhsa.version: [1, 2]','amdhsa.kernels:']
    for (name,nv,wg) in kernels:
        L+= [f'  - .name: {name}',f'    .symbol: {name}.kd','    .kernarg_segment_size: 24','    .kernarg_segment_align: 8',
             '    .group_segment_fixed_size: 0','    .private_segment_fixed_size: 0','    .wavefront_size: 64',
             '    .sgpr_count: 32',f'    .vgpr_count: {nv}',f'    .max_flat_workgroup_size: {wg}','    .args:',
             '      - {.name: kernargs, .size: 24, .offset: 0, .value_kind: by_value}']
    L+=['...','.end_amdgpu_metadata']
    return L
if __name__=='__main__':
    cfgs=[]
    for pattern in ['contig','mf','nat']:
        for (W,D) in [(4,4),(8,2),(8,4),(16,2)]:
            for pol,pn in [('',''),('nt','nt')]:
                cfgs.append((f'k_{pattern}_w{W}_d{D}{pn}',dict(pattern=pattern,W=W,D=D,pol=pol)))
    out=[]; ks=[]
    for n,c in cfgs:
        L,nv=gen(n,**c)
        out+=L; ks.append((n,nv,c['W']*64))
    out+=meta(ks)
    open('stream.s','w').write('\n'.join(out)+'\n')
    with open('stream.args','w') as f:
        f.write(' '.join(f'stream.co:{n}:256:{w}:0' for n,nv,w in ks))
```

```python
from gen_stream import meta
def gen(name, W=16, D=2, VW=4, mode='A', pol='nt', nwg=256, skew=0, rot=0, TK=16):
    tb=TK*384; nl=TK*384//1024
    nvw=W//VW; NV=nwg*nvw
    keys_per_v=128*8192//NV
    tiles_per_wave=keys_per_v//TK//VW
    L=[]; A=L.append
    A('.text'); A(f'.globl {name}'); A('.p2align 8'); A(f'.type {name},@function'); A(f'{name}:')
    A(f'  s_cmp_ge_u32 s2, {nwg}')
    A(f'  s_cbranch_scc1 L_done_{name}')
    A('  s_load_dwordx4 s[4:7], s[0:1], 0')
    A('  s_load_dwordx2 s[26:27], s[0:1], 16')
    A('  s_memrealtime s[28:29]')
    A('  s_waitcnt lgkmcnt(0)')
    A('  s_mov_b32 s8, s4'); A('  s_and_b32 s9, s5, 0xffff'); A('  s_mov_b32 s10, 402653184'); A('  s_mov_b32 s11, 0x20000')
    A('  s_mov_b32 s12, s6'); A('  s_and_b32 s13, s7, 0xffff'); A('  s_mov_b32 s14, 402653184'); A('  s_mov_b32 s15, 0x20000')
    A('  v_lshrrev_b32 v1, 6, v0'); A('  v_and_b32 v2, 63, v0'); A('  s_nop 0'); A('  v_readfirstlane_b32 s16, v1')
    A('  v_and_b32 v7, 3, v2'); A('  v_bfe_u32 v8, v2, 2, 2'); A('  v_lshrrev_b32 v9, 4, v2'); A('  v_lshlrev_b32 v3, 4, v7'); A('  v_mul_u32_u24 v8, 768, v8')
    A('  v_add_u32 v3, v3, v8'); A('  v_lshlrev_b32 v10, 6, v9'); A('  v_add_u32 v3, v3, v10')
    A('  v_and_b32 v7, 15, v2'); A('  v_lshlrev_b32 v5, 4, v7'); A('  v_mul_u32_u24 v9, 768, v9'); A('  v_add_u32 v5, v5, v9')
    A('  v_add_u32 v4, 6144, v3'); A('  v_add_u32 v6, 6144, v5')
    koffs=[(('v3' if g<2 else 'v4'),(g%2)*3072+jj*256) for g in range(TK//8) for jj in range(3)]
    voffs=[(('v5' if g<2 else 'v6'),(g%2)*3072+jj*256) for g in range(TK//8) for jj in range(3)]
    import math
    A(f'  s_lshr_b32 s18, s16, {int(math.log2(VW))}')
    A(f'  s_and_b32 s19, s16, {VW-1}')
    if mode=='A':
        A(f'  s_mul_i32 s20, s2, {nvw}'); A('  s_add_u32 s20, s20, s18')
    else:
        A(f'  s_add_u32 s22, s2, {rot}'); A(f'  s_and_b32 s22, s22, {nwg-1}')
        A(f'  s_mul_i32 s20, s18, {nwg}'); A('  s_add_u32 s20, s20, s22')
    A(f'  s_mul_i32 s17, s20, {keys_per_v*384}')
    A(f'  s_mul_i32 s19, s19, {tb}'); A('  s_add_u32 s17, s17, s19')
    A(f'  s_mul_i32 s21, s2, {W}'); A('  s_add_u32 s21, s21, s16')
    base=12
    def regs(d,i): return base+(d*2*nl+i)*4
    nv=base+D*2*nl*4
    def issue(d):
        for i,(r,o) in enumerate(koffs):
            rr=regs(d,i); A(f'  buffer_load_dwordx4 v[{rr}:{rr+3}], {r}, s[8:11], s17 offen offset:{o} {pol}')
        for i,(r,o) in enumerate(voffs):
            rr=regs(d,nl+i); A(f'  buffer_load_dwordx4 v[{rr}:{rr+3}], {r}, s[12:15], s17 offen offset:{o} {pol}')
        A(f'  s_add_u32 s17, s17, {tb*VW}')
    for d in range(D): issue(d)
    A(f'  s_mov_b32 s20, {tiles_per_wave//D - 1}')
    A(f'L_loop_{name}:')
    for d in range(D):
        A(f'  s_waitcnt vmcnt({min(63,(D-1)*2*nl)})')
        for i in range(2*nl):
            A(f'  v_xor_b32 v11, v11, v{regs(d,i)}')
        issue(d)
    A('  s_sub_u32 s20, s20, 1'); A('  s_cmp_lg_u32 s20, 0'); A(f'  s_cbranch_scc1 L_loop_{name}')
    A('  s_waitcnt vmcnt(0)')
    for d in range(D):
        for i in range(2*nl):
            A(f'  v_xor_b32 v11, v11, v{regs(d,i)}')
    A('  s_memrealtime s[30:31]')
    A('  s_getreg_b32 s24, hwreg(HW_REG_XCC_ID)')
    A('  s_getreg_b32 s25, hwreg(HW_REG_HW_ID)')
    A('  s_waitcnt lgkmcnt(0)')
    A('  s_lshl_b32 s21, s21, 5')
    A('  v_mov_b32 v1, s21')
    A('  v_mov_b32 v4, s28'); A('  v_mov_b32 v5, s29'); A('  v_mov_b32 v6, s30'); A('  v_mov_b32 v7, s31')
    A('  global_store_dwordx4 v1, v[4:7], s[26:27]')
    A('  s_nop 3')
    A('  v_mov_b32 v4, s24'); A('  v_mov_b32 v5, s25'); A('  v_mov_b32 v6, v11'); A('  v_mov_b32 v7, 0')
    A('  global_store_dwordx4 v1, v[4:7], s[26:27] offset:16')
    A(f'L_done_{name}:')
    A('  s_endpgm')
    A('.section .rodata,"a"'); A('.p2align 6'); A(f'.amdhsa_kernel {name}')
    A(f'  .amdhsa_next_free_vgpr {nv}'); A('  .amdhsa_next_free_sgpr 40'); A(f'  .amdhsa_accum_offset {(nv+3)//4*4}')
    A('  .amdhsa_group_segment_fixed_size 0'); A('  .amdhsa_kernarg_size 24'); A('  .amdhsa_user_sgpr_count 2')
    A('  .amdhsa_user_sgpr_kernarg_segment_ptr 1'); A('  .amdhsa_system_sgpr_workgroup_id_x 1'); A('.end_amdhsa_kernel'); A('.text')
    return L,nv
if __name__=='__main__':
    cfgs=[]
    cfgs.append(('v_w16_d2_v16_A',dict(W=16,D=2,VW=16,mode='A')))
    cfgs.append(('v_w16_d2_v4_A',dict(W=16,D=2,VW=4,mode='A')))
    cfgs.append(('v_w16_d2_v4_B',dict(W=16,D=2,VW=4,mode='B')))
    cfgs.append(('v_w16_d2_v1_A',dict(W=16,D=2,VW=1,mode='A')))
    cfgs.append(('v_w16_d2_v1_B',dict(W=16,D=2,VW=1,mode='B')))
    cfgs.append(('v_w16_d2_v2_A',dict(W=16,D=2,VW=2,mode='A')))
    cfgs.append(('v_w8_d2_v4_A',dict(W=8,D=2,VW=4,mode='A')))
    cfgs.append(('v_w8_d2_v8_A',dict(W=8,D=2,VW=8,mode='A')))
    cfgs.append(('v_w8_d4_v4_A',dict(W=8,D=4,VW=4,mode='A')))
    cfgs.append(('v_w8_d4_v1_A',dict(W=8,D=4,VW=1,mode='A')))
    cfgs.append(('v_w4_d4_v1_A',dict(W=4,D=4,VW=1,mode='A')))
    cfgs.append(('v_w4_d4_v4_A',dict(W=4,D=4,VW=4,mode='A')))
    cfgs.append(('v_n1024_w4_d2',dict(W=4,D=2,VW=4,mode='A',nwg=1024)))
    cfgs.append(('v_n512_w8_d2',dict(W=8,D=2,VW=8,mode='A',nwg=512)))
    out=['.amdgcn_target "amdgcn-amd-amdhsa--gfx950"']; ks=[]
    for n,c in cfgs:
        L,nv=gen(n,**c)
        out+=L; ks.append((n,nv,c['W']*64,c.get('nwg',256)))
    out+=meta([(n,nv,w) for n,nv,w,g in ks])
    open('v1.s','w').write('\n'.join(out)+'\n')
    with open('v1.args','w') as f:
        f.write(' '.join(f'v1.co:{n}:{g}:{w}:0' for n,nv,w,g in ks))
```

```python
import sys, re
from gen_virt import gen
NAME='gated_mix__mha_block_cached__glu_gated_geglu__decode_kernel'
def make(path, **kw):
    L,nv=gen(NAME, **kw)
    out=['.amdgcn_target "amdgcn-amd-amdhsa--gfx950"']
    for l in L:
        l=l.replace('s_load_dwordx4 s[4:7], s[0:1], 0','s_load_dwordx4 s[4:7], s[0:1], 8')
        l=l.replace('s_load_dwordx2 s[26:27], s[0:1], 16','s_load_dwordx2 s[26:27], s[0:1], 96')
        l=l.replace('.amdhsa_kernarg_size 24','.amdhsa_kernarg_size 104')
        out.append(l)
    out+=['.amdgpu_metadata','---','amdhsa.version: [1, 2]','amdhsa.kernels:',f'  - .name: {NAME}',f'    .symbol: {NAME}.kd','    .kernarg_segment_size: 104','    .kernarg_segment_align: 8',
      '    .group_segment_fixed_size: 0','    .private_segment_fixed_size: 0','    .wavefront_size: 64','    .sgpr_count: 40',f'    .vgpr_count: {nv}',f'    .max_flat_workgroup_size: {kw["W"]*64}','    .args:',
      '      - {.name: kernargs, .size: 104, .offset: 0, .value_kind: by_value}','...','.end_amdgpu_metadata']
    open(path,'w').write('\n'.join(out)+'\n')
make('fb_w8.s',W=8,D=4,VW=4,mode='B')
make('fb_w16.s',W=16,D=2,VW=1,mode='B')
make('fb_w8v1.s',W=8,D=4,VW=1,mode='B')

names=[]
for (W,D,VW,TK) in [(8,4,4,16),(8,2,4,32),(8,2,4,16),(8,8,4,8),(8,4,4,8)]:
    n=f'fd_w{W}_d{D}_v{VW}_t{TK}'
    make(n+'.s',W=W,D=D,VW=VW,mode='B',TK=TK); names.append((n,W))
open('fd.args','w').write(' '.join(f'{n}.co:256:{W*64}:0' for n,W in names))
open('fd.list','w').write(' '.join(n for n,W in names))
```

```python
import sys, struct

NAME = 'gated_mix__mha_block_cached__glu_gated_geglu__decode_kernel'

def f2u(x):
    return struct.unpack('<I', struct.pack('<f', x))[0]

class G:
    def __init__(self):
        self.L = []
        self.n = 0
    def e(self, s):
        import re
        if s.startswith('buffer_'):
            m = re.search(r'offset:(\d+)', s)
            assert not m or int(m.group(1)) < 4096, s
        if s.startswith('ds_'):
            m = re.search(r'offset:(\d+)', s)
            assert not m or int(m.group(1)) < 65536, s
        self.L.append('    ' + s)
    def lab(self, s):
        self.L.append(s + ':')
    def uid(self, p):
        self.n += 1
        return f'L_{p}_{self.n}'
    def c(self, s):
        self.L.append('    ; ' + s)

class Opt:
    TS = False
    D = 4
    PACE = 12
    PRIO = True
    NOQ = False
    QVAL = 0
    BAL = True
    BALMODE = 0
    BAL2 = True
    GAMMA = 1.0
    PIPE = True
    SIDEB = True
    DELAY = 0
    DELAYQ = 0
    WARM = False
    QPOLL = 0
    NOSTORE = False
    PEVERY = 1
    KPOL = ['nt','nt']
    VPOL = ['nt','nt']
    CURG = 0
    DTS = False
    NOSIDE = False
    SIDEMODE = 0
    NOCOMP = False
O = Opt

NT = 32
WPOL = 'nt'
import os
if os.environ.get('WPOL') is not None: WPOL = os.environ['WPOL']
TB = 6144
KV_BYTES = 402653184
WQ_BYTES = 640 * 6144 * 2
WO_BYTES = 6144 * 640 * 2
WG_BYTES = 640 * 1536 * 2
WD_BYTES = 1536 * 640 * 2
WS_PART = 0
WS_F1 = 0x100000
WS_OUTP = 0x1C0000
WS_QP = 0x290000
WS_EPOCH = 0x410000
WS_BAL = 0x420000
WS_H = 0x430000
WS_BYTES = 0x440000
WS_TS = 0x500000
L_QS = 0
L_QZ = 768
L_OD = 1024
L_MISC = 4096
L_DA = 4352
L_DP = L_DA + 8 * 3328
L_DP2 = L_DP + 4 * 4096
LDS_USED = L_DP2 + 4 * 2048
LDS_BYTES = 84 * 1024
C_MERGE0 = 0; C_MERGE1 = 4; C_R1DONE = 8; C_SB1 = 12; C_SB2 = 16; C_SB3 = 20; C_QA = 24; C_QRDY = 28; C_SPLIT = 36

V_LANE = 1; V_N = 2; V_G = 3; V_KOFF = 4; V_VOFF = 5
V_MASK = 6
V_L = 10; V_M = 11
V_O = 12
V_QB = 24
V_S = 36
V_PB = 44
V_T = 52
V_TILE = 64
V_EP = 10

S_X = 4; S_K = 6; S_V = 8; S_WQ = 10; S_WO = 12; S_WGATE = 16; S_WUP = 18; S_WDOWN = 20
S_GW = 22; S_OUT = 24; S_DBG = 26; S_WS = 28
S_W = 30; S_WI = 31
R_K = 32; R_V = 36; R_WS = 40; R_W = 44; R_X = 48; R_G = 52
S_H = 56; S_R = 57; S_B0 = 58; S_QT = 59; S_GRP = 60; S_B = 61; S_BH = 62
S_KOFF = 63; S_LOOP = 64; S_C = 65; S_TH = 66; S_REM = 67
S_M1 = 68; S_M2 = 70
S_T = 72
S_F = 88; S_C1 = 89; S_S1 = 90; S_CB = 91; S_SRC = 92; S_ROLE = 93
S_SPIN = 94
S_STRIDE = 95; S_CONS = 84; S_TOT = 85; S_CNT = 86; S_BALO = 83; S_ISB = 82; S_KTRUE = 81
V_PP = V_T + 7; V_DEC = V_T + 8; V_BO = V_T + 10; V_PR = V_T + 11
NSTAT = 24; NMAX = 40
FLEX = 8
S_REM2 = 79; S_K2 = 80; S_SLAB = 82; S_HOOK = 86
S_BMY = 80; S_BPA = 79; S_PROP = 78
S_TAG = 14
SPIN_MAX = 1 << 17


def dstamp(g, k, wv):
    sk = g.uid('ds')
    g.e(f's_cmp_lg_u32 s{S_W}, {wv}')
    g.e(f's_cbranch_scc1 {sk}')
    g.e(f's_mov_b32 s99, {4*k}')
    g.e('s_cmp_eq_u32 s2, 0')
    g.e(f's_cbranch_scc1 {sk}_go')
    g.e(f's_mov_b32 s99, {4*k+32}')
    g.e('s_cmp_eq_u32 s2, 133')
    g.e(f's_cbranch_scc0 {sk}')
    g.lab(sk + '_go')
    g.e('s_memrealtime s[96:97]')
    g.e('s_waitcnt lgkmcnt(0)')
    g.e(f'v_mov_b32 v{V_T+8}, s96')
    g.e(f'v_mov_b32 v{V_T+7}, s99')
    g.e('s_mov_b64 s[100:101], exec')
    g.e('s_mov_b64 exec, 1')
    g.e(f'global_store_dword v{V_T+7}, v{V_T+8}, s[{S_DBG}:{S_DBG+1}]')
    g.e('s_mov_b64 exec, s[100:101]')
    g.e('s_nop 1')
    g.lab(sk)

def stamp(g, k):
    if O.DTS:
        m = {0: [(0, 0)], 1: [(1, 0)], 10: [(2, 0)], 2: [(3, 0)], 3: [(4, 0), (5, 4)], 6: [(6, 0)], 7: [(7, 0)]}
        for (kk, wv) in m.get(k, []):
            dstamp(g, kk, wv)
        return
    if not O.TS: return
    g.e('s_memrealtime s[96:97]')
    g.e(f's_lshl_b32 s98, s2, 3')
    g.e(f's_add_u32 s98, s98, s{S_W}')
    g.e(f's_lshl_b32 s98, s98, 7')
    g.e(f's_add_u32 s98, s98, {WS_TS + k*8}')
    g.e('s_waitcnt lgkmcnt(0)')
    g.e(f'v_mov_b32 v{V_T+8}, s96')
    g.e(f'v_mov_b32 v{V_T+9}, s97')
    g.e(f'v_mov_b32 v{V_T+7}, 0')
    g.e('s_mov_b64 s[100:101], exec')
    g.e('s_mov_b64 exec, 1')
    g.e(f'buffer_store_dwordx2 v[{V_T+8}:{V_T+9}], v{V_T+7}, s[{R_WS}:{R_WS+3}], s98 offen')
    g.e('s_mov_b64 exec, s[100:101]')
    g.e('s_nop 1')

def srd(g, r, sptr, nbytes):
    g.e(f's_mov_b32 s{r}, s{sptr}')
    g.e(f's_and_b32 s{r+1}, s{sptr+1}, 0xffff')
    g.e(f's_mov_b32 s{r+2}, {nbytes}')
    g.e(f's_mov_b32 s{r+3}, 0x20000')

def vr(a, n=4):
    return f'v[{a}:{a+n-1}]'

def spin_init(g):
    g.e(f's_mov_b32 s{S_SPIN}, {SPIN_MAX}')
def spin_guard(g, done):
    g.e(f's_sub_u32 s{S_SPIN}, s{S_SPIN}, 1')
    g.e(f's_cmp_eq_u32 s{S_SPIN}, 0')
    g.e(f's_cbranch_scc1 {done}')

def lds_wait(g, cofs, target, sleep=1):
    lp = g.uid('lw'); dn = g.uid('lwd')
    g.e(f'v_mov_b32 v{V_T+10}, {L_MISC + cofs}')
    spin_init(g)
    g.lab(lp)
    g.e(f'ds_read_b32 v{V_T+11}, v{V_T+10}')
    g.e('s_waitcnt lgkmcnt(0)')
    g.e(f'v_readfirstlane_b32 s{S_T+15}, v{V_T+11}')
    g.e('s_nop 3')
    g.e(f's_cmp_ge_u32 s{S_T+15}, {target}')
    g.e(f's_cbranch_scc1 {dn}')
    spin_guard(g, dn)
    g.e(f's_sleep {sleep}')
    g.e(f's_branch {lp}')
    g.lab(dn)

def lds_inc(g, cofs):
    g.e('s_waitcnt lgkmcnt(0)')
    g.e(f'v_mov_b32 v{V_T+10}, {L_MISC + cofs}')
    g.e(f'v_mov_b32 v{V_T+11}, 1')
    g.e('s_mov_b64 exec, 1')
    g.e(f'ds_add_u32 v{V_T+10}, v{V_T+11}')
    g.e('s_mov_b64 exec, -1')

def subbarrier(g, cofs, target=4):
    lds_inc(g, cofs)
    lds_wait(g, cofs, target)

def wave_sum(g, v, t, sdst):
    for off in (0x041F, 0x081F, 0x101F, 0x201F, 0x401F):
        g.e(f'ds_swizzle_b32 v{t}, v{v} offset:{off:#x}')
        g.e('s_waitcnt lgkmcnt(0)')
        g.e(f'v_add_f32 v{v}, v{v}, v{t}')
    g.e('s_nop 1')
    g.e(f'v_readlane_b32 s{sdst}, v{v}, 0')
    g.e(f'v_readlane_b32 s{sdst+1}, v{v}, 32')
    g.e('s_nop 3')
    g.e(f'v_mov_b32 v{v}, s{sdst}')
    g.e(f'v_add_f32 v{v}, s{sdst+1}, v{v}')

def tile_reg(d, kv, u, jj):
    return V_TILE + d * 48 + kv * 24 + (u * 3 + jj) * 4

def issue_k(g, d):
    for u in range(2):
        for jj in range(3):
            r = tile_reg(d, 0, u, jj)
            g.e(f'buffer_load_dwordx4 {vr(r)}, v{V_KOFF}, s[{R_K}:{R_K+3}], s{S_KOFF} offen offset:{u*3072+jj*256} {O.KPOL[O.CURG]}')

def issue_v(g, d):
    for u in range(2):
        for jj in range(3):
            r = tile_reg(d, 1, u, jj)
            g.e(f'buffer_load_dwordx4 {vr(r)}, v{V_VOFF}, s[{R_V}:{R_V+3}], s{S_KOFF} offen offset:{u*3072+jj*256} {O.VPOL[O.CURG]}')

def switch_run(g):
    ok = g.uid('ar')
    g.e(f's_cmp_lg_u32 s{S_REM}, 0')
    g.e(f's_cbranch_scc1 {ok}')
    g.e(f's_mov_b32 s{S_REM}, s{S_REM2}')
    g.e(f's_mov_b32 s{S_REM2}, 0')
    g.e(f's_mov_b32 s{S_KTRUE}, s{S_K2}')
    g.e(f's_mov_b32 s{S_STRIDE}, {(-4*TB) & 0xffffffff:#x}')
    g.lab(ok)

def advance(g):
    g.e(f's_add_u32 s{S_KTRUE}, s{S_KTRUE}, s{S_STRIDE}')
    g.e(f's_sub_u32 s{S_REM}, s{S_REM}, 1')
    if O.BAL2 and O.CURG == 1:
        switch_run(g)
    g.e(f's_cmp_gt_i32 s{S_REM}, 0')
    g.e(f's_cselect_b32 s{S_KOFF}, s{S_KTRUE}, 0x80000000')

def raw_offsets(g, vd, voa, vob, t0, t1):
    g.e(f'v_lshrrev_b32 v{t0}, 3, v{vd}')
    g.e(f'v_and_b32 v{t1}, 7, v{vd}')
    g.e(f'v_and_b32 v{voa}, 15, v{t0}')
    g.e(f'v_lshrrev_b32 v{vob}, 2, v{voa}')
    g.e(f'v_lshlrev_b32 v{vob}, 4, v{vob}')
    g.e(f'v_add_u32 v{vob}, v{vob}, v{t1}')
    g.e(f'v_lshlrev_b32 v{vob}, 4, v{vob}')
    g.e(f'v_and_b32 v{voa}, 3, v{voa}')
    g.e(f'v_lshl_add_u32 v{voa}, v{voa}, 2, v{vob}')
    g.e(f'v_lshrrev_b32 v{vob}, 4, v{t0}')
    g.e(f'v_lshl_add_u32 v{voa}, v{vob}, 10, v{voa}')
    g.e(f'v_cmp_gt_u32 vcc, 8, v{t0}')
    g.e(f'v_add_u32 v{vob}, 8, v{t0}')
    g.e(f'v_subrev_u32 v{t0}, 8, v{t0}')
    g.e(f'v_cndmask_b32 v{t0}, v{t0}, v{vob}, vcc')
    g.e(f'v_cndmask_b32 v{vob}, 0, 1, vcc')
    g.e(f'v_lshlrev_b32 v{vob}, 10, v{vob}')
    g.e(f'v_sub_u32 v{vob}, 2048, v{vob}')
    g.e(f'v_add_u32 v{t1}, 8, v{t1}')
    g.e(f'v_and_b32 v{V_T+9}, 3, v{t0}')
    g.e(f'v_lshl_add_u32 v{vob}, v{V_T+9}, 2, v{vob}')
    g.e(f'v_lshrrev_b32 v{t0}, 2, v{t0}')
    g.e(f'v_lshl_add_u32 v{t0}, v{t0}, 4, v{t1}')
    g.e(f'v_lshl_add_u32 v{vob}, v{t0}, 4, v{vob}')

def pair_offset(g, vo):
    t = V_T + 9
    g.e(f'v_and_b32 v{vo}, 3, v{V_LANE}')
    g.e(f'v_lshlrev_b32 v{vo}, 1, v{vo}')
    g.e(f'v_lshl_add_u32 v{vo}, v{V_G}, 4, v{vo}')
    g.e(f'v_lshlrev_b32 v{vo}, 4, v{vo}')
    g.e(f'v_bfe_u32 v{t}, v{V_LANE}, 2, 2')
    g.e(f'v_lshl_add_u32 v{vo}, v{t}, 2, v{vo}')
    g.e(f's_and_b32 s{S_T}, s{S_WI}, 1')
    g.e(f's_lshl_b32 s{S_T}, s{S_T}, 7')
    g.e(f's_lshr_b32 s{S_T+1}, s{S_WI}, 1')
    g.e(f's_lshl_b32 s{S_T+1}, s{S_T+1}, 10')
    g.e(f's_add_u32 s{S_T}, s{S_T}, s{S_T+1}')
    g.e(f'v_add_u32 v{vo}, s{S_T}, v{vo}')

def tag_check(g, regs, acc, t):
    first = True
    for r in regs:
        g.e(f'v_xor_b32 v{t}, s{S_TAG}, v{r+2}')
        if first:
            g.e(f'v_xor_b32 v{acc}, s{S_TAG+1}, v{r+3}')
            g.e(f'v_or_b32 v{acc}, v{acc}, v{t}')
            first = False
        else:
            g.e(f'v_xor_b32 v{t+1}, s{S_TAG+1}, v{r+3}')
            g.e(f'v_or3_b32 v{acc}, v{acc}, v{t}, v{t+1}')

def light_poll(g, voff, soff, nlanes, sleep, tmp):
    lp = g.uid('lp'); dn = g.uid('lpd')
    g.e(f's_mov_b64 exec, {(1 << nlanes) - 1:#x}')
    spin_init(g)
    g.lab(lp)
    g.e(f'buffer_load_dwordx4 {vr(tmp)}, v{voff}, s[{R_WS}:{R_WS+3}], s{soff} offen sc1')
    g.e('s_waitcnt vmcnt(0)')
    g.e(f'v_xor_b32 v{tmp}, s{S_TAG}, v{tmp+2}')
    g.e(f'v_xor_b32 v{tmp+1}, s{S_TAG+1}, v{tmp+3}')
    g.e(f'v_or_b32 v{tmp}, v{tmp}, v{tmp+1}')
    g.e(f'v_cmp_ne_u32 vcc, 0, v{tmp}')
    g.e(f's_cbranch_vccz {dn}')
    spin_guard(g, dn)
    g.e(f's_sleep {sleep}')
    g.e(f's_branch {lp}')
    g.lab(dn)
    g.e('s_mov_b64 exec, -1')

def store_gran(g, base, voff, soff, imm=0):
    g.e(f'v_mov_b32 v{base+2}, s{S_TAG}')
    g.e(f'v_mov_b32 v{base+3}, s{S_TAG+1}')
    g.e(f'buffer_store_dwordx4 {vr(base)}, v{voff}, s[{R_WS}:{R_WS+3}], s{soff} offen offset:{imm} sc1')


def main_loop(g, gi):
    e = g.e
    D = O.D
    g.lab(f'L_main_{gi}')
    NW = 6 + 12 * (D - 1)
    X0 = V_T; X1 = V_T + 1; Y0 = V_T + 2; Y1 = V_T + 3; E0 = V_T + 4; E1 = V_T + 5; MX = V_T + 6
    for d in range(D):
        Lr = f'L_resc_{gi}_{d}'; Lb = f'L_back_{gi}_{d}'
        if O.NOCOMP:
            e(f's_cmp_ge_u32 s{S_CONS}, s{S_TOT}')
            e('s_cbranch_scc1 L_fin')
            e(f's_add_u32 s{S_CONS}, s{S_CONS}, 1')
            e(f's_waitcnt vmcnt({NW})')
            issue_k(g, d)
            e(f's_waitcnt vmcnt({NW})')
            issue_v(g, d)
            advance(g)
            g.lab(Lb)
            continue
        e(f's_cmp_ge_u32 s{S_CONS}, s{S_TOT}')
        e('s_cbranch_scc1 L_fin')
        e(f's_add_u32 s{S_CONS}, s{S_CONS}, 1')
        e(f's_waitcnt vmcnt({NW})')
        for jj in range(3):
            for u in range(2):
                s = V_S + u * 4
                cc = '0' if jj == 0 else vr(s)
                e(f'v_mfma_f32_16x16x32_bf16 {vr(s)}, {vr(tile_reg(d,0,u,jj))}, {vr(V_QB+jj*4)}, {cc}')
        issue_k(g, d)
        e('s_nop 1')
        e(f'v_cndmask_b32 v{X0}, v{V_S+0}, v{V_S+1}, s[{S_M1}:{S_M1+1}]')
        e(f'v_cndmask_b32 v{Y0}, v{V_S+2}, v{V_S+3}, s[{S_M1}:{S_M1+1}]')
        e(f'v_cndmask_b32 v{X1}, v{V_S+4}, v{V_S+5}, s[{S_M1}:{S_M1+1}]')
        e(f'v_cndmask_b32 v{Y1}, v{V_S+6}, v{V_S+7}, s[{S_M1}:{S_M1+1}]')
        e(f'v_cndmask_b32 v{X0}, v{X0}, v{Y0}, s[{S_M2}:{S_M2+1}]')
        e(f'v_cndmask_b32 v{X1}, v{X1}, v{Y1}, s[{S_M2}:{S_M2+1}]')
        e('s_nop 0')
        e(f'v_add_f32_dpp v{X0}, v{X0}, v{X0} quad_perm:[1,0,3,2] row_mask:0xf bank_mask:0xf')
        e(f'v_add_f32_dpp v{X1}, v{X1}, v{X1} quad_perm:[1,0,3,2] row_mask:0xf bank_mask:0xf')
        e('s_nop 0')
        e(f'v_add_f32_dpp v{X0}, v{X0}, v{X0} quad_perm:[2,3,0,1] row_mask:0xf bank_mask:0xf')
        e(f'v_add_f32_dpp v{X1}, v{X1}, v{X1} quad_perm:[2,3,0,1] row_mask:0xf bank_mask:0xf')
        e(f'v_fma_f32 v{E0}, v{X0}, s{S_C}, -v{V_M}')
        e(f'v_fma_f32 v{E1}, v{X1}, s{S_C}, -v{V_M}')
        e(f'v_max_f32 v{MX}, v{E0}, v{E1}')
        e(f'v_cmp_lt_f32 vcc, s{S_TH}, v{MX}')
        e(f's_cbranch_vccnz {Lr}')
        g.lab(Lb)
        e(f'v_exp_f32 v{E0}, v{E0}')
        e(f'v_exp_f32 v{E1}, v{E1}')
        e('s_nop 0')
        e(f'v_cvt_pk_bf16_f32 v{X0}, v{E0}, v{E0}')
        e(f'v_cvt_pk_bf16_f32 v{X1}, v{E1}, v{E1}')
        e(f'v_add_f32 v{V_L}, v{V_L}, v{E0}')
        e(f'v_add_f32 v{V_L}, v{V_L}, v{E1}')
        for i in range(4):
            e(f'v_and_b32 v{V_PB+i}, v{X0}, v{V_MASK+i}')
        for i in range(4):
            e(f'v_and_b32 v{V_PB+4+i}, v{X1}, v{V_MASK+i}')
        e(f's_waitcnt vmcnt({NW})')
        for u in range(2):
            for jj in range(3):
                o = V_O + jj * 4
                e(f'v_mfma_f32_16x16x32_bf16 {vr(o)}, {vr(tile_reg(d,1,u,jj))}, {vr(V_PB+u*4)}, {vr(o)}')
        issue_v(g, d)
        advance(g)
    if O.BAL2 and gi == 1:
        e(f's_add_u32 s{S_LOOP}, s{S_LOOP}, 1')
        e(f's_cmp_lg_u32 s{S_LOOP}, s{S_HOOK}')
        e(f's_cbranch_scc1 L_main_{gi}')
        lds_wait(g, C_SPLIT, 1, sleep=1)
        W_ = S_T + 15
        e(f's_and_b32 s{S_T}, s{W_}, 0xff')
        e(f's_bfe_u32 s{S_T+1}, s{W_}, 0x80008')
        e(f's_bfe_u32 s{S_T+2}, s{W_}, 0x80010')
        e(f's_mov_b32 s{S_T+3}, 0')
        e(f's_mov_b32 s{S_T+4}, s{S_T}')
        e(f's_cmp_ge_u32 s{S_QT}, 1')
        e(f's_cselect_b32 s{S_T+3}, s{S_T}, s{S_T+3}')
        e(f's_cselect_b32 s{S_T+4}, s{S_T+1}, s{S_T+4}')
        e(f's_cmp_ge_u32 s{S_QT}, 2')
        e(f's_cselect_b32 s{S_T+3}, s{S_T+1}, s{S_T+3}')
        e(f's_cselect_b32 s{S_T+4}, s{S_T+2}, s{S_T+4}')
        e(f's_cmp_ge_u32 s{S_QT}, 3')
        e(f's_cselect_b32 s{S_T+3}, s{S_T+2}, s{S_T+3}')
        e(f's_cselect_b32 s{S_T+4}, 128, s{S_T+4}')
        e(f's_sub_u32 s{S_TOT}, s{S_T+4}, s{S_T+3}')
        e(f's_lshl_b32 s{S_T}, s{S_QT}, 5')
        e(f's_add_u32 s{S_T}, s{S_T}, {FLEX}')
        e(f's_sub_u32 s{S_REM2}, s{S_T}, s{S_T+3}')
        e(f's_add_u32 s{S_T+1}, s{S_QT}, 1')
        e(f's_and_b32 s{S_T+1}, s{S_T+1}, 2')
        e(f's_cmp_eq_u32 s{S_T+1}, 0')
        e(f's_cselect_b32 s{S_REM2}, 0, s{S_REM2}')
        e(f's_sub_u32 s{S_REM}, s{S_TOT}, s{S_REM2}')
        e(f's_lshl_b32 s{S_T}, s{S_HOOK}, 2')
        e(f's_add_u32 s{S_T}, s{S_T}, 4')
        e(f's_sub_u32 s{S_REM}, s{S_REM}, s{S_T}')
        switch_run(g)
        e(f's_cmp_gt_i32 s{S_REM}, 0')
        e(f's_cselect_b32 s{S_KOFF}, s{S_KTRUE}, 0x80000000')
        e(f's_branch L_main_{gi}')
    else:
        e(f's_branch L_main_{gi}')
    for d in range(D):
        Lr = f'L_resc_{gi}_{d}'; Lb = f'L_back_{gi}_{d}'
        g.lab(Lr)
        e(f'v_mul_f32 v{X0}, s{S_C}, v{X0}')
        e(f'v_mul_f32 v{X1}, s{S_C}, v{X1}')
        e(f'v_max_f32 v{MX}, v{X0}, v{X1}')
        e('s_nop 1')
        e(f'v_max_f32_dpp v{MX}, v{MX}, v{MX} row_ror:8 row_mask:0xf bank_mask:0xf')
        e('s_nop 1')
        e(f'v_readlane_b32 s{S_T}, v{MX}, 0')
        e(f'v_readlane_b32 s{S_T+1}, v{MX}, 16')
        e(f'v_readlane_b32 s{S_T+2}, v{MX}, 32')
        e(f'v_readlane_b32 s{S_T+3}, v{MX}, 48')
        e('s_nop 3')
        e(f'v_max_f32 v{MX}, s{S_T}, v{V_M}')
        e(f'v_max_f32 v{MX}, s{S_T+1}, v{MX}')
        e(f'v_max_f32 v{MX}, s{S_T+2}, v{MX}')
        e(f'v_max_f32 v{MX}, s{S_T+3}, v{MX}')
        e(f'v_sub_f32 v{Y0}, v{V_M}, v{MX}')
        e(f'v_exp_f32 v{Y0}, v{Y0}')
        e(f'v_mov_b32 v{V_M}, v{MX}')
        e('s_nop 7')
        for i in range(12):
            e(f'v_mul_f32 v{V_O+i}, v{V_O+i}, v{Y0}')
        e(f'v_mul_f32 v{V_L}, v{V_L}, v{Y0}')
        e(f'v_sub_f32 v{E0}, v{X0}, v{V_M}')
        e(f'v_sub_f32 v{E1}, v{X1}, v{V_M}')
        e(f's_branch {Lb}')


def take_epoch(g):
    g.e(f'v_readfirstlane_b32 s{S_TAG}, v{V_EP}')
    g.e(f'v_readfirstlane_b32 s{S_TAG+1}, v{V_EP+1}')
    g.e('s_nop 3')

def build():
    g = G()
    e = g.e
    D = O.D
    e(f's_cmp_ge_u32 s2, 256')
    e('s_cbranch_scc1 L_end')
    e('s_load_dwordx16 s[4:19], s[0:1], 0')
    e('s_load_dwordx8 s[20:27], s[0:1], 64')
    e('s_load_dwordx2 s[28:29], s[0:1], 96')
    e(f'v_and_b32 v{V_LANE}, 63, v0')
    e(f'v_lshrrev_b32 v{V_T}, 6, v0')
    e(f'v_and_b32 v{V_N}, 15, v{V_LANE}')
    e(f'v_lshrrev_b32 v{V_G}, 4, v{V_LANE}')
    e(f'v_readfirstlane_b32 s{S_W}, v{V_T}')
    e(f's_and_b32 s{S_QT}, s2, 3')
    e(f's_bfe_u32 s{S_H}, s2, 0x50002')
    e(f's_lshr_b32 s{S_B0}, s2, 7')
    e(f's_lshl_b32 s{S_R}, s{S_B0}, 2')
    e(f's_add_u32 s{S_R}, s{S_R}, s{S_QT}')
    e(f's_lshr_b32 s{S_GRP}, s{S_W}, 2')
    e(f's_and_b32 s{S_WI}, s{S_W}, 3')
    e(f's_lshl_b32 s{S_B}, s{S_GRP}, 1')
    e(f's_add_u32 s{S_B}, s{S_B}, s{S_B0}')
    e(f's_lshl_b32 s{S_BH}, s{S_B}, 5')
    e(f's_add_u32 s{S_BH}, s{S_BH}, s{S_H}')
    e(f's_mul_i32 s{S_KOFF}, s{S_BH}, 3145728')
    e(f's_mul_i32 s{S_T+1}, s{S_WI}, {TB}')
    e(f's_add_u32 s{S_SLAB}, s{S_KOFF}, s{S_T+1}')
    e(f's_lshl_b32 s{S_T}, s{S_QT}, 5')
    e(f's_mov_b32 s{S_STRIDE}, {4*TB}')
    e(f's_mov_b32 s{S_REM}, {NT}')
    e(f's_mov_b32 s{S_TOT}, {NT}')
    e(f's_mov_b32 s{S_REM2}, 0')
    if O.BAL2:
        Lb2 = g.uid('b2'); Lb3 = g.uid('b3')
        e(f's_cmp_eq_u32 s{S_GRP}, 0')
        e(f's_cbranch_scc1 {Lb2}')
        e(f's_mov_b32 s{S_REM}, 1000')
        e(f's_mov_b32 s{S_TOT}, 1000')
        e(f's_cmp_eq_u32 s{S_QT}, 0')
        e(f's_cbranch_scc1 {Lb2}')
        e(f's_add_u32 s{S_T}, s{S_T}, {FLEX}')
        e(f's_cmp_eq_u32 s{S_QT}, 3')
        e(f's_cbranch_scc0 {Lb2}')
        e(f's_mov_b32 s{S_T}, 127')
        e(f's_mov_b32 s{S_STRIDE}, {(-4*TB) & 0xffffffff:#x}')
        g.lab(Lb2)
    e(f's_mul_i32 s{S_T+1}, s{S_T}, {4*TB}')
    e(f's_add_u32 s{S_KOFF}, s{S_SLAB}, s{S_T+1}')
    e(f's_sub_u32 s{S_K2}, s{S_KOFF}, {4*TB}')
    e(f's_lshr_b32 s{S_BALO}, s2, 2')
    e(f's_lshl_b32 s{S_BALO}, s{S_BALO}, 6')
    e(f's_add_u32 s{S_BALO}, s{S_BALO}, {WS_BAL}')
    e(f's_add_u32 s{S_T+1}, s{S_QT}, 1')
    e(f's_and_b32 s{S_T+1}, s{S_T+1}, 2')
    e(f's_cmp_eq_u32 s{S_T+1}, 0')
    e(f's_cselect_b32 s{S_HOOK}, {(32-FLEX-4)//4}, {(32-2*FLEX-4)//4}')
    e(f's_mov_b32 s{S_KTRUE}, s{S_KOFF}')
    e(f's_mov_b32 s{S_CONS}, 0')
    e(f's_mul_i32 s{S_F}, s{S_H}, 3')
    e(f's_add_u32 s{S_F}, s{S_F}, s{S_R}')
    e(f's_sub_u32 s{S_F}, s{S_F}, 5')
    e(f's_mul_i32 s{S_S1}, s{S_F}, 43')
    e(f's_lshr_b32 s{S_S1}, s{S_S1}, 9')
    e(f's_mul_i32 s{S_T}, s{S_S1}, 12')
    e(f's_sub_u32 s{S_C1}, s{S_F}, s{S_T}')
    e(f's_mov_b32 s{S_CB}, s{S_R}')
    e(f's_mov_b32 s{S_SRC}, s{S_H}')
    e(f's_mov_b32 s{S_ROLE}, 0')
    Lrd = g.uid('rd')
    e(f's_cmp_ge_u32 s{S_R}, 5')
    e(f's_cbranch_scc0 {Lrd}')
    e(f's_mov_b32 s{S_CB}, s{S_C1}')
    e(f's_add_u32 s{S_SRC}, s{S_S1}, 32')
    e(f's_mov_b32 s{S_ROLE}, 1')
    e(f's_cmp_ge_u32 s{S_C1}, 5')
    e(f's_cbranch_scc0 {Lrd}')
    e(f's_mov_b32 s{S_ROLE}, 2')
    g.lab(Lrd)
    e(f'v_and_b32 v{V_T}, 3, v{V_N}')
    e(f'v_lshrrev_b32 v{V_T+1}, 2, v{V_N}')
    e(f'v_mul_u32_u24 v{V_KOFF}, 768, v{V_T+1}')
    e(f'v_lshl_add_u32 v{V_KOFF}, v{V_T}, 4, v{V_KOFF}')
    e(f'v_lshl_add_u32 v{V_KOFF}, v{V_G}, 6, v{V_KOFF}')
    e(f'v_mul_u32_u24 v{V_VOFF}, 768, v{V_G}')
    e(f'v_lshl_add_u32 v{V_VOFF}, v{V_N}, 4, v{V_VOFF}')
    e(f'v_and_b32 v{V_T}, 1, v{V_N}')
    e(f'v_cmp_ne_u32 s[{S_M1}:{S_M1+1}], 0, v{V_T}')
    e(f'v_and_b32 v{V_T}, 2, v{V_N}')
    e(f'v_cmp_ne_u32 s[{S_M2}:{S_M2+1}], 0, v{V_T}')
    e(f'v_mov_b32 v{V_T+1}, 0xffff')
    e(f'v_mov_b32 v{V_T+2}, 0xffff0000')
    e(f'v_cndmask_b32 v{V_T+1}, v{V_T+1}, v{V_T+2}, s[{S_M1}:{S_M1+1}]')
    e(f'v_bfe_u32 v{V_T}, v{V_N}, 1, 2')
    for i in range(4):
        e(f'v_cmp_eq_u32 vcc, {i}, v{V_T}')
        e('s_nop 1')
        e(f'v_cndmask_b32 v{V_MASK+i}, 0, v{V_T+1}, vcc')
    e(f's_mov_b32 s{S_C}, {f2u((192 ** -0.5) * 1.4426950408889634):#x}')
    e(f's_mov_b32 s{S_TH}, {f2u(8.0):#x}')
    e(f'v_lshlrev_b32 v{V_T}, 2, v{V_LANE}')
    e(f'v_add_u32 v{V_T}, {L_MISC}, v{V_T}')
    e(f'v_mov_b32 v{V_T+1}, 0')
    e(f'ds_write_b32 v{V_T}, v{V_T+1}')
    e(f'v_mov_b32 v{V_T}, {L_QZ}')
    for k in range(4):
        e(f'ds_write_b32 v{V_T}, v{V_T+1} offset:{4*k}')
    e('s_waitcnt lgkmcnt(0)')
    e('s_barrier')
    e('s_memrealtime s[96:97]')
    srd(g, R_K, S_K, KV_BYTES)
    srd(g, R_V, S_V, KV_BYTES)
    srd(g, R_WS, S_WS, WS_BYTES if not O.TS else WS_TS + 0x40000)
    srd(g, R_W, S_WQ, WQ_BYTES)
    srd(g, R_X, S_X, 5120)
    e(f'v_mov_b32 v{V_EP}, {WS_EPOCH}')
    e(f'buffer_load_dwordx2 v[{V_EP}:{V_EP+1}], v{V_EP}, s[{R_WS}:{R_WS+3}], 0 offen sc1')
    stamp(g, 0)
    e('s_waitcnt lgkmcnt(0)')
    e(f's_mov_b32 s{S_PROP}, s96')
    e(f's_cmp_eq_u32 s{S_GRP}, 0')
    e('s_cbranch_scc1 L_qphase')
    O.CURG = 1
    groups = []
    for d in range(D):
        groups.append(('k', d)); groups.append(('v', d))
    for i, (kv, d) in enumerate(groups):
        if O.DELAY and i == O.DELAY - 1:
            lds_wait(g, C_QA, 4, sleep=1)
        if O.DELAYQ and i == O.DELAYQ - 1:
            lds_wait(g, C_QRDY, 4, sleep=1)
        if O.PACE and (i * 6) > O.PACE:
            e(f's_waitcnt vmcnt({O.PACE})')
        if kv == 'k':
            issue_k(g, d)
        else:
            issue_v(g, d); advance(g)
    lds_wait(g, C_QRDY, 4, sleep=1)
    e('s_branch L_qready')
    O.CURG = 0
    g.lab('L_qphase')
    if O.NOQ:
        e('s_waitcnt lgkmcnt(0)')
        e(f's_mul_i32 s{S_TAG}, s{S_TAG}, 0x9E3779B1')
        e(f's_add_u32 s{S_TAG}, s{S_TAG}, 0x632BE5AB')
        e(f's_lshr_b32 s{S_T+4}, s{S_TAG}, 15')
        e(f's_xor_b32 s{S_TAG+1}, s{S_TAG+1}, s{S_T+4}')
        e(f's_mul_i32 s{S_TAG+1}, s{S_TAG+1}, 0x85EBCA6B')
        e(f's_add_u32 s{S_TAG+1}, s{S_TAG+1}, 0xC2B2AE35')
        e(f'v_lshlrev_b32 v{V_T}, 2, v{V_LANE}')
        e(f'v_mov_b32 v{V_T+1}, {O.QVAL:#x}')
        e(f'v_xor_b32 v{V_T+1}, v{V_T+1}, v{V_T}') if O.QVAL else None
        for k in range(3):
            e(f'ds_write_b32 v{V_T}, v{V_T+1} offset:{k*256}')
        subbarrier(g, C_QRDY)
        for d in range(D):
            issue_k(g, d); issue_v(g, d); advance(g)
        e('s_branch L_qready2')
    if O.PRIO:
        e('s_setprio 3')
    if O.WARM:
        e(f's_mul_i32 s{S_T}, s{S_H}, {8*6144}')
        e(f's_add_u32 s{S_T}, s{S_T}, {WS_QP}')
        e(f'v_mov_b32 v{V_T}, 0')
        e(f'buffer_load_dword v{V_TILE+60}, v{V_T}, s[{R_WS}:{R_WS+3}], s{S_T} offen sc1')
        e(f's_add_u32 s{S_T}, s{S_T}, {8*6144-64}')
        e(f'buffer_load_dword v{V_TILE+61}, v{V_T}, s[{R_WS}:{R_WS+3}], s{S_T} offen sc1')
    XV = V_TILE + 40
    AX = V_TILE
    AY = V_TILE + 20
    e(f'v_lshrrev_b32 v{V_T}, 3, v{V_N}')
    e(f'v_mul_u32_u24 v{V_T}, 640, v{V_T}')
    e(f'v_add_lshl_u32 v{V_T}, v{V_T}, v{V_G}, 1')
    e(f's_mul_i32 s{S_T+2}, s{S_R}, 80')
    e(f's_mul_i32 s{S_T+1}, s{S_WI}, 20')
    e(f's_add_u32 s{S_T+2}, s{S_T+2}, s{S_T+1}')
    e(f's_lshl_b32 s{S_T+1}, s{S_T+2}, 1')
    e(f'v_mul_u32_u24 v{V_T+1}, 12288, v{V_G}')
    e(f'v_lshl_add_u32 v{V_T+1}, v{V_N}, 4, v{V_T+1}')
    e(f'v_add_u32 v{V_T+2}, 256, v{V_T+1}')
    e(f'v_mov_b32 v{V_T+3}, 0x40000000')
    e(f'v_cmp_gt_u32 vcc, 8, v{V_N}')
    e(f's_mul_i32 s{S_T}, s{S_T+2}, 12288')
    e(f's_mul_i32 s{S_T+3}, s{S_H}, 384')
    e(f'v_cndmask_b32 v{V_T+2}, v{V_T+3}, v{V_T+2}, vcc')
    e(f's_add_u32 s{S_T}, s{S_T}, s{S_T+3}')
    for t in range(5):
        e(f'buffer_load_dwordx4 {vr(AX+t*4)}, v{V_T+1}, s[{R_W}:{R_W+3}], s{S_T} offen {WPOL}')
        e(f'buffer_load_dwordx4 {vr(AY+t*4)}, v{V_T+2}, s[{R_W}:{R_W+3}], s{S_T} offen {WPOL}')
        if t < 4:
            e(f's_add_u32 s{S_T}, s{S_T}, {4*12288}')
    for t in range(5):
        for P in range(2):
            e(f'buffer_load_ushort v{XV + t*2 + P}, v{V_T}, s[{R_X}:{R_X+3}], s{S_T+1} offen offset:{t*8 + P*2560}')
    def mix():
        e(f's_mul_i32 s{S_TAG}, s{S_TAG}, 0x9E3779B1')
        e(f's_add_u32 s{S_TAG}, s{S_TAG}, 0x632BE5AB')
        e(f's_lshr_b32 s{S_T+4}, s{S_TAG}, 15')
        e(f's_xor_b32 s{S_TAG+1}, s{S_TAG+1}, s{S_T+4}')
        e(f's_mul_i32 s{S_TAG+1}, s{S_TAG+1}, 0x85EBCA6B')
        e(f's_add_u32 s{S_TAG+1}, s{S_TAG+1}, 0xC2B2AE35')
    e('s_waitcnt vmcnt(0)')
    take_epoch(g)
    mix()
    stamp(g, 1)
    for k in range(10):
        e(f'v_lshl_or_b32 v{XV+k}, v{XV+k}, 16, v{XV+k}')
    QD = V_O
    for t in range(5):
        for P in range(2):
            for i in range(4):
                e(f'v_and_b32 v{V_PB + P*4 + i}, v{XV + t*2 + P}, v{V_MASK+i}')
        e('s_nop 1')
        for xy in range(2):
            for P in range(2):
                dd = QD + (xy*2+P)*4
                cc = '0' if t == 0 else vr(dd)
                a = (AX if xy == 0 else AY) + t*4
                e(f'v_mfma_f32_16x16x32_bf16 {vr(dd)}, {vr(a)}, {vr(V_PB+P*4)}, {cc}')
    e('s_nop 7')
    e('s_nop 3')
    e(f's_lshl_b32 s{S_T}, s{S_WI}, 12')
    e(f'v_lshlrev_b32 v{V_T}, 4, v{V_LANE}')
    e(f'v_add_u32 v{V_T}, s{S_T}, v{V_T}')
    for k in range(4):
        e(f'ds_write_b128 v{V_T}, {vr(QD+k*4)} offset:{L_DP + k*1024}')
    subbarrier(g, C_QA)
    stamp(g, 8)
    pair_offset(g, V_T)
    for xy in range(2):
        for el in range(2):
            for wv in range(4):
                e(f'ds_read_b32 v{V_S + (xy*2+el)*4 + wv}, v{V_T} offset:{L_DP + wv*4096 + xy*2048 + el*16}')
    e('s_waitcnt lgkmcnt(0)')
    GA = V_TILE
    for xy in range(2):
        for el in range(2):
            b = V_S + (xy*2+el)*4
            e(f'v_add_f32 v{b}, v{b}, v{b+1}')
            e(f'v_add_f32 v{b+2}, v{b+2}, v{b+3}')
            e(f'v_add_f32 v{GA + xy*4 + el}, v{b}, v{b+2}')
    e(f's_lshl_b32 s{S_T}, s{S_H}, 3')
    e(f's_add_u32 s{S_T}, s{S_T}, s{S_R}')
    e(f's_lshl_b32 s{S_T}, s{S_T}, 2')
    e(f's_add_u32 s{S_T}, s{S_T}, s{S_WI}')
    e(f's_mul_i32 s{S_T}, s{S_T}, 1536')
    e(f's_add_u32 s{S_T}, s{S_T}, {WS_QP}')
    e(f'v_lshlrev_b32 v{V_T+1}, 4, v{V_LANE}')
    store_gran(g, GA, V_T+1, S_T, 0)
    e('s_mov_b32 exec_hi, 0')
    store_gran(g, GA+4, V_T+1, S_T, 1024)
    e('s_mov_b64 exec, -1')
    stamp(g, 9)
    e(f's_lshr_b32 s{S_T+1}, s{S_WI}, 1')
    e(f's_and_b32 s{S_T+2}, s{S_WI}, 1')
    e(f's_lshl_b32 s{S_T+3}, s{S_T+1}, 1')
    e(f's_add_u32 s{S_T+3}, s{S_T+3}, s{S_B0}')
    e(f's_lshl_b32 s{S_T}, s{S_H}, 5')
    e(f's_add_u32 s{S_T}, s{S_T}, s{S_T+3}')
    e(f's_mul_i32 s{S_T}, s{S_T}, 1536')
    e(f's_mul_i32 s{S_T+3}, s{S_T+2}, {48*16}')
    e(f's_add_u32 s{S_T}, s{S_T}, s{S_T+3}')
    e(f's_add_u32 s{S_T}, s{S_T}, {WS_QP}')
    e(f'v_min_u32 v{V_T+1}, 47, v{V_LANE}')
    e(f'v_lshlrev_b32 v{V_T+1}, 4, v{V_T+1}')
    GQ = V_TILE + 8
    GQ2 = V_TILE + 48
    Lq = g.uid('qp'); Lqd = g.uid('qpd')
    def qissue(base):
        e(f's_mov_b32 s{S_T+4}, s{S_T}')
        for rr in range(8):
            e(f'buffer_load_dwordx4 {vr(base+rr*4)}, v{V_T+1}, s[{R_WS}:{R_WS+3}], s{S_T+4} offen sc1')
            if rr < 7:
                e(f's_add_u32 s{S_T+4}, s{S_T+4}, 6144')
    spin_init(g)
    if not O.PIPE:
        g.lab(Lq)
        qissue(GQ)
        e('s_waitcnt vmcnt(0)')
        tag_check(g, [GQ+rr*4 for rr in range(8)], V_T+2, V_T+3)
        e(f'v_cmp_ne_u32 vcc, 0, v{V_T+2}')
        e(f's_cbranch_vccz {Lqd}')
        spin_guard(g, Lqd)
        e('s_sleep 1')
        e(f's_branch {Lq}')
    else:
        Lq2 = g.uid('qp2')
        qissue(GQ)
        g.lab(Lq)
        e('s_sleep 6')
        qissue(GQ2)
        e('s_waitcnt vmcnt(8)')
        tag_check(g, [GQ+rr*4 for rr in range(8)], V_T+2, V_T+3)
        e(f'v_cmp_ne_u32 vcc, 0, v{V_T+2}')
        e(f's_cbranch_vccz {Lqd}')
        spin_guard(g, Lqd)
        e('s_sleep 6')
        qissue(GQ)
        e('s_waitcnt vmcnt(8)')
        tag_check(g, [GQ2+rr*4 for rr in range(8)], V_T+2, V_T+3)
        e(f'v_cmp_ne_u32 vcc, 0, v{V_T+2}')
        e(f's_cbranch_vccnz {Lq}')
        e('s_waitcnt vmcnt(0)')
        for rr in range(8):
            e(f'v_mov_b32 v{GQ+rr*4}, v{GQ2+rr*4}')
            e(f'v_mov_b32 v{GQ+rr*4+1}, v{GQ2+rr*4+1}')
    g.lab(Lqd)
    stamp(g, 10)
    for rr in range(1, 8):
        e(f'v_add_f32 v{GQ}, v{GQ}, v{GQ+rr*4}')
        e(f'v_add_f32 v{GQ+1}, v{GQ+1}, v{GQ+rr*4+1}')
    e(f'v_cvt_pk_bf16_f32 v{GQ}, v{GQ}, v{GQ+1}')
    e(f's_mul_i32 s{S_T+1}, s{S_T+1}, 384')
    e(f's_mul_i32 s{S_T+2}, s{S_T+2}, 192')
    e(f's_add_u32 s{S_T+1}, s{S_T+1}, s{S_T+2}')
    e(f'v_min_u32 v{V_T+1}, 47, v{V_LANE}')
    e(f'v_lshlrev_b32 v{V_T+1}, 2, v{V_T+1}')
    e(f'v_add_u32 v{V_T+1}, s{S_T+1}, v{V_T+1}')
    e(f'ds_write_b32 v{V_T+1}, v{GQ} offset:{L_QS}')
    subbarrier(g, C_QRDY)
    if O.PRIO:
        e('s_setprio 0')
    e('s_waitcnt vmcnt(0)')
    for d in range(D):
        issue_k(g, d); issue_v(g, d); advance(g)
    e('s_branch L_qready2')
    g.lab('L_qready')
    e(f's_waitcnt vmcnt({12*D})')
    take_epoch(g)
    mix()
    g.lab('L_qready2')
    stamp(g, 2)
    e(f'v_and_b32 v{V_T}, 3, v{V_N}')
    e(f'v_lshl_add_u32 v{V_T}, v{V_G}, 2, v{V_T}')
    e(f'v_lshlrev_b32 v{V_T}, 4, v{V_T}')
    e(f's_mul_i32 s{S_T}, s{S_GRP}, 384')
    e(f's_add_u32 s{S_T}, s{S_T}, {L_QS}')
    e(f'v_add_u32 v{V_T}, s{S_T}, v{V_T}')
    e(f'v_mov_b32 v{V_T+1}, {L_QZ}')
    e(f'v_cmp_gt_u32 s[{S_T+2}:{S_T+3}], 8, v{V_N}')
    e(f'v_cmp_gt_u32 s[{S_T+4}:{S_T+5}], 2, v{V_G}')
    e('s_nop 1')
    e(f'v_cndmask_b32 v{V_T+2}, v{V_T+1}, v{V_T}, s[{S_T+2}:{S_T+3}]')
    e(f'v_add_u32 v{V_T+3}, 128, v{V_T}')
    e(f'v_cndmask_b32 v{V_T+4}, v{V_T+3}, v{V_T+1}, s[{S_T+2}:{S_T+3}]')
    e(f'v_add_u32 v{V_T+3}, 256, v{V_T}')
    e(f'v_cndmask_b32 v{V_T+3}, v{V_T+1}, v{V_T+3}, s[{S_T+4}:{S_T+5}]')
    e(f'v_subrev_u32 v{V_T+5}, 128, v{V_T}')
    e(f'v_cndmask_b32 v{V_T+5}, v{V_T+5}, v{V_T+1}, s[{S_T+4}:{S_T+5}]')
    e(f'v_cndmask_b32 v{V_T+3}, v{V_T+5}, v{V_T+3}, s[{S_T+2}:{S_T+3}]')
    e(f'ds_read_b128 {vr(V_QB)}, v{V_T+2}')
    e(f'ds_read_b128 {vr(V_QB+4)}, v{V_T+3}')
    e(f'ds_read_b128 {vr(V_QB+8)}, v{V_T+4}')
    for i in range(12):
        e(f'v_mov_b32 v{V_O+i}, 0')
    e(f'v_mov_b32 v{V_L}, 0')
    e(f'v_mov_b32 v{V_M}, 0xff800000')
    e(f's_mov_b32 s{S_LOOP}, 0')
    e(f'v_mov_b32 v{V_BO}, 0')
    e('s_waitcnt lgkmcnt(0)')
    e(f's_cmp_eq_u32 s{S_GRP}, 0')
    e('s_cbranch_scc0 L_main_1')
    for gi in range(2):
        O.CURG = gi
        main_loop(g, gi)
    g.lab('L_fin')
    e('s_waitcnt vmcnt(0)')
    stamp(g, 3)
    e('s_nop 7')
    e('s_nop 3')
    e(f'v_add_f32_dpp v{V_L}, v{V_L}, v{V_L} row_ror:8 row_mask:0xf bank_mask:0xf')
    e('s_nop 1')
    e(f'v_readlane_b32 s{S_T}, v{V_L}, 0')
    e(f'v_readlane_b32 s{S_T+1}, v{V_L}, 16')
    e(f'v_readlane_b32 s{S_T+2}, v{V_L}, 32')
    e(f'v_readlane_b32 s{S_T+3}, v{V_L}, 48')
    e('s_nop 3')
    e(f'v_mov_b32 v{V_T+1}, s{S_T}')
    e(f'v_add_f32 v{V_T+1}, s{S_T+1}, v{V_T+1}')
    e(f'v_add_f32 v{V_T+1}, s{S_T+2}, v{V_T+1}')
    e(f'v_add_f32 v{V_T+1}, s{S_T+3}, v{V_T+1}')
    e(f'v_mov_b32 v{V_T}, v{V_M}')
    e(f's_mul_i32 s{S_T}, s{S_W}, 3328')
    e(f'v_lshlrev_b32 v{V_T+2}, 4, v{V_LANE}')
    e(f'v_add_u32 v{V_T+2}, s{S_T}, v{V_T+2}')
    for jj in range(3):
        e(f'ds_write_b128 v{V_T+2}, {vr(V_O+jj*4)} offset:{L_DA + jj*1024}')
    e(f'v_mov_b32 v{V_T+3}, s{S_T}')
    e(f'ds_write_b64 v{V_T+3}, v[{V_T}:{V_T+1}] offset:{L_DA + 3072}')
    Lg1 = g.uid('g1'); Lg2 = g.uid('g2')
    e(f's_cmp_eq_u32 s{S_GRP}, 0')
    e(f's_cbranch_scc0 {Lg1}')
    subbarrier(g, C_MERGE0)
    e(f's_branch {Lg2}')
    g.lab(Lg1)
    subbarrier(g, C_MERGE1)
    g.lab(Lg2)
    e(f's_mul_i32 s{S_T}, s{S_WI}, 48')
    e(f'v_add_u32 v{V_T}, s{S_T}, v{V_LANE}')
    e(f'v_min_u32 v{V_T}, 191, v{V_T}')
    raw_offsets(g, V_T, V_T+1, V_T+2, V_T+3, V_T+4)
    e(f's_mul_i32 s{S_T}, s{S_GRP}, {4*3328}')
    e(f'v_add_u32 v{V_T+1}, s{S_T}, v{V_T+1}')
    e(f'v_add_u32 v{V_T+2}, s{S_T}, v{V_T+2}')
    e(f'v_mov_b32 v{V_T+3}, s{S_T}')
    for wv in range(4):
        e(f'ds_read_b32 v{V_S+wv*2}, v{V_T+1} offset:{L_DA + wv*3328}')
        e(f'ds_read_b32 v{V_S+wv*2+1}, v{V_T+2} offset:{L_DA + wv*3328}')
        e(f'ds_read_b64 v[{V_PB+wv*2}:{V_PB+wv*2+1}], v{V_T+3} offset:{L_DA + wv*3328 + 3072}')
    e('s_waitcnt lgkmcnt(0)')
    e(f'v_max_f32 v{V_T+4}, v{V_PB}, v{V_PB+2}')
    e(f'v_max3_f32 v{V_T+4}, v{V_T+4}, v{V_PB+4}, v{V_PB+6}')
    for wv in range(4):
        e(f'v_sub_f32 v{V_PB+wv*2}, v{V_PB+wv*2}, v{V_T+4}')
        e(f'v_exp_f32 v{V_PB+wv*2}, v{V_PB+wv*2}')
        e(f'v_add_f32 v{V_S+wv*2}, v{V_S+wv*2}, v{V_S+wv*2+1}')
    e('s_nop 0')
    GA = V_TILE
    e(f'v_mul_f32 v{GA}, v{V_S}, v{V_PB}')
    e(f'v_mul_f32 v{V_T+6}, v{V_PB+1}, v{V_PB}')
    for wv in range(1, 4):
        e(f'v_fmac_f32 v{GA}, v{V_S+wv*2}, v{V_PB+wv*2}')
        e(f'v_fmac_f32 v{V_T+6}, v{V_PB+wv*2+1}, v{V_PB+wv*2}')
    e('s_nop 1')
    e(f'v_mov_b32_dpp v{GA+1}, v{GA} quad_perm:[1,0,3,2] row_mask:0xf bank_mask:0xf')
    e(f's_lshl_b32 s{S_T}, s{S_BH}, 2')
    e(f's_add_u32 s{S_T}, s{S_T}, s{S_QT}')
    e(f's_lshl_b32 s{S_T}, s{S_T}, 11')
    e(f'v_lshlrev_b32 v{V_T}, 3, v{V_T}')
    e(f'v_cmp_eq_u32 vcc, 48, v{V_LANE}')
    e(f'v_mov_b32 v{V_T+7}, {96*16}')
    e('s_nop 0')
    e(f'v_cndmask_b32 v{V_T}, v{V_T}, v{V_T+7}, vcc')
    e(f'v_cndmask_b32 v{GA}, v{GA}, v{V_T+4}, vcc')
    e(f'v_cndmask_b32 v{GA+1}, v{GA+1}, v{V_T+6}, vcc')
    e(f's_mov_b32 s{S_T+2}, 0x55555555')
    e(f's_mov_b32 s{S_T+3}, 0x00015555')
    e(f's_mov_b64 exec, s[{S_T+2}:{S_T+3}]')
    store_gran(g, GA, V_T, S_T, 0)
    e('s_mov_b64 exec, -1')
    stamp(g, 4)
    Lc = g.uid('cont')
    if O.NOSIDE:
        e('s_endpgm')
    e(f's_cmp_eq_u32 s{S_GRP}, 0')
    e(f's_cbranch_scc1 {Lc}')
    lds_inc(g, C_R1DONE)
    e('s_waitcnt lgkmcnt(0)')
    e('s_endpgm')
    g.lab(Lc)
    if O.SIDEMODE == 1:
        lds_wait(g, C_R1DONE, 4, sleep=2)
        e('s_endpgm')
    if O.SIDEMODE == 2:
        lds_wait(g, C_R1DONE, 4, sleep=64)
        e('s_endpgm')
    if O.SIDEMODE == 3:
        e(f's_cmp_eq_u32 s{S_ROLE}, 0')
        e('s_cbranch_scc0 L_end')
    if O.SIDEMODE == 5:
        e(f's_cmp_eq_u32 s{S_ROLE}, 0')
        e('s_cbranch_scc0 L_end')
    if O.SIDEMODE == 4:
        e(f's_cmp_eq_u32 s{S_ROLE}, 0')
        e('s_cbranch_scc1 L_end')
    if O.BAL2:
        Lng = g.uid('ng')
        e(f's_cmp_eq_u32 s{S_WI}, 0')
        e(f's_cbranch_scc0 {Lng}')
        e('s_memrealtime s[96:97]')
        e('s_waitcnt lgkmcnt(0)')
        e(f's_sub_u32 s97, s96, s{S_PROP}')
        GA2 = V_TILE + 8
        if O.SIDEB:
            e(f's_mov_b32 s{S_T}, 33')
            e(f's_cmp_eq_u32 s{S_ROLE}, 1')
            e(f's_cselect_b32 s{S_T}, 61, s{S_T}')
            e(f's_cmp_eq_u32 s{S_ROLE}, 2')
            e(f's_cselect_b32 s{S_T}, 27, s{S_T}')
            e(f's_mul_i32 s{S_T}, s{S_T}, s97')
            e(f's_lshr_b32 s{S_T}, s{S_T}, 10')
            e(f's_add_u32 s96, s96, s{S_T}')
        e(f'v_mov_b32 v{GA2}, s96')
        e(f'v_mov_b32 v{GA2+1}, s97')
        e(f's_lshl_b32 s{S_T}, s{S_QT}, 4')
        e(f's_add_u32 s{S_T+1}, s{S_BALO}, s{S_T}')
        e(f'v_mov_b32 v{V_T}, 0')
        e('s_mov_b64 exec, 1')
        store_gran(g, GA2, V_T, S_T+1, 0)
        e('s_mov_b64 exec, -1')
        e('s_nop 1')
        e(f'v_and_b32 v{V_T}, 3, v{V_LANE}')
        e(f'v_lshlrev_b32 v{V_T}, 4, v{V_T}')
        light_poll(g, V_T, S_BALO, 4, 16, GA2+4)
        e(f'buffer_load_dwordx4 {vr(GA2+4)}, v{V_T}, s[{R_WS}:{R_WS+3}], s{S_BALO} offen sc1')
        e('s_waitcnt vmcnt(0)')
        TJ = GA2 + 4; DJ = GA2 + 5
        e('s_nop 0')
        e(f'v_readlane_b32 s{S_T+3}, v{TJ}, 0')
        e('s_nop 3')
        e(f'v_subrev_u32 v{V_T+1}, s{S_T+3}, v{TJ}')
        e(f'v_cvt_f32_i32 v{V_T+1}, v{V_T+1}')
        e(f'v_cvt_f32_u32 v{V_T+2}, v{DJ}')
        e(f'v_rcp_f32 v{V_T+2}, v{V_T+2}')
        e('s_nop 0')
        e(f'v_mul_f32 v{V_T+2}, {f2u(32.0):#x}, v{V_T+2}')
        e(f'v_mul_f32 v{V_T+3}, v{V_T+1}, v{V_T+2}')
        e(f'v_mov_b32 v{V_T+4}, v{V_T+2}')
        e('s_nop 1')
        for pm in ('[1,0,3,2]', '[2,3,0,1]'):
            e(f'v_add_f32_dpp v{V_T+3}, v{V_T+3}, v{V_T+3} quad_perm:{pm} row_mask:0xf bank_mask:0xf')
            e(f'v_add_f32_dpp v{V_T+4}, v{V_T+4}, v{V_T+4} quad_perm:{pm} row_mask:0xf bank_mask:0xf')
            e('s_nop 1')
        e(f'v_add_f32 v{V_T+3}, {f2u(128.0):#x}, v{V_T+3}')
        e(f'v_rcp_f32 v{V_T+4}, v{V_T+4}')
        e('s_nop 0')
        e(f'v_mul_f32 v{V_T+3}, v{V_T+3}, v{V_T+4}')
        e(f'v_sub_f32 v{V_T+3}, v{V_T+3}, v{V_T+1}')
        e(f'v_mul_f32 v{V_T+3}, v{V_T+3}, v{V_T+2}')
        e(f'v_mul_f32 v{V_T+3}, {f2u(O.GAMMA):#x}, v{V_T+3}')
        e(f'v_add_f32 v{V_T+3}, {f2u(32.0*(1.0-O.GAMMA)):#x}, v{V_T+3}')
        e('s_nop 1')
        e(f'v_readlane_b32 s{S_T+3}, v{V_T+3}, 0')
        e(f'v_readlane_b32 s{S_T+4}, v{V_T+3}, 1')
        e(f'v_readlane_b32 s{S_T+5}, v{V_T+3}, 2')
        e('s_nop 3')
        e(f'v_mov_b32 v{V_T+1}, s{S_T+3}')
        e(f'v_add_f32 v{V_T+2}, s{S_T+4}, v{V_T+1}')
        e(f'v_add_f32 v{V_T+3}, s{S_T+5}, v{V_T+2}')
        for k in range(3):
            r = V_T + 1 + k
            e(f'v_add_f32 v{r}, 0.5, v{r}')
            e(f'v_max_f32 v{r}, {f2u(float(32*(k+1)-FLEX)):#x}, v{r}')
            e(f'v_min_f32 v{r}, {f2u(float(32*(k+1)+FLEX)):#x}, v{r}')
            e(f'v_cvt_u32_f32 v{r}, v{r}')
        e(f'v_lshl_or_b32 v{V_T+1}, v{V_T+2}, 8, v{V_T+1}')
        e(f'v_lshl_or_b32 v{V_T+1}, v{V_T+3}, 16, v{V_T+1}')
        e(f'v_mov_b32 v{V_T}, {L_MISC + C_SPLIT}')
        e(f'ds_write_b32 v{V_T}, v{V_T+1}')
        e('s_waitcnt lgkmcnt(0)')
        g.lab(Lng)
    g.c('gate for batch wi: lane handles k = 2*lane + 128*i')
    srd(g, R_W, S_GW, 1280)
    srd(g, R_X, S_X, 5120)
    e(f'v_lshlrev_b32 v{V_T}, 2, v{V_LANE}')
    e(f's_mul_i32 s{S_T}, s{S_WI}, 1280')
    for i in range(5):
        e(f'buffer_load_dword v{V_S+i}, v{V_T}, s[{R_W}:{R_W+3}], 0 offen offset:{i*256}')
        e(f'buffer_load_dword v{V_S+5+i}, v{V_T}, s[{R_X}:{R_X+3}], s{S_T} offen offset:{i*256}')
    e('s_waitcnt vmcnt(0)')
    e(f'v_mov_b32 v{V_T+4}, 0')
    for i in range(5):
        e(f'v_lshlrev_b32 v{V_T+5}, 16, v{V_S+i}')
        e(f'v_and_b32 v{V_T+6}, 0xffff0000, v{V_S+i}')
        e(f'v_lshlrev_b32 v{V_T+7}, 16, v{V_S+5+i}')
        e(f'v_and_b32 v{V_T+8}, 0xffff0000, v{V_S+5+i}')
        e(f'v_fmac_f32 v{V_T+4}, v{V_T+5}, v{V_T+7}')
        e(f'v_fmac_f32 v{V_T+4}, v{V_T+6}, v{V_T+8}')
    wave_sum(g, V_T+4, V_T+5, S_T)
    V_GATE = V_L
    e(f'v_mul_f32 v{V_T+4}, {f2u(-1.4426950408889634):#x}, v{V_T+4}')
    e(f'v_exp_f32 v{V_T+4}, v{V_T+4}')
    e('s_nop 0')
    e(f'v_add_f32 v{V_T+4}, 1.0, v{V_T+4}')
    e(f'v_rcp_f32 v{V_GATE}, v{V_T+4}')
    e('s_nop 0')
    TILE = V_TILE
    e(f's_cmp_eq_u32 s{S_ROLE}, 0')
    e('s_cbranch_scc0 L_ffn')
    srd(g, R_W, S_WO, WO_BYTES)
    e(f'v_mul_u32_u24 v{V_T}, 1280, v{V_G}')
    e(f'v_lshl_add_u32 v{V_T}, v{V_N}, 4, v{V_T}')
    e(f's_mul_i32 s{S_T}, s{S_H}, 192')
    e(f's_mul_i32 s{S_T+1}, s{S_WI}, 48')
    e(f's_add_u32 s{S_T}, s{S_T}, s{S_T+1}')
    e(f's_mul_i32 s{S_T}, s{S_T}, 1280')
    e(f's_lshl_b32 s{S_T+1}, s{S_CB}, 8')
    e(f's_add_u32 s{S_T}, s{S_T}, s{S_T+1}')
    for t in range(12):
        e(f'buffer_load_dwordx4 {vr(TILE+t*4)}, v{V_T}, s[{R_W}:{R_W+3}], s{S_T} offen {WPOL}')
        if t < 11:
            e(f's_add_u32 s{S_T}, s{S_T}, {4*1280}')
    lds_wait(g, C_R1DONE, 4, sleep=2)
    stamp(g, 5)
    if O.SIDEMODE == 3:
        e('s_endpgm')
    e(f's_lshl_b32 s{S_T}, s{S_WI}, 5')
    e(f's_add_u32 s{S_T}, s{S_T}, s{S_H}')
    e(f's_lshl_b32 s{S_T}, s{S_T}, 13')
    e(f's_add_u32 s{S_T+1}, s{S_T}, 4096')
    e(f'v_lshlrev_b32 v{V_T}, 4, v{V_LANE}')
    e(f'v_min_u32 v{V_T+1}, 31, v{V_LANE}')
    e(f'v_lshlrev_b32 v{V_T+1}, 4, v{V_T+1}')
    e(f'v_add_u32 v{V_T+1}, 1024, v{V_T+1}')
    e(f'v_mov_b32 v{V_T+2}, {96*16}')
    PG = V_TILE + 48
    if O.QPOLL == 0:
        e(f'v_lshlrev_b32 v{V_T+3}, 11, v{V_LANE}')
        e(f'v_add_u32 v{V_T+3}, {96*16}, v{V_T+3}')
        light_poll(g, V_T+3, S_T, 4, 2, PG)
        Lp = g.uid('pp'); Lpd = g.uid('ppd')
        spin_init(g)
        g.lab(Lp)
        for qt in range(4):
            for j in range(3):
                e(f'buffer_load_dwordx4 {vr(PG+(qt*3+j)*4)}, v{V_T+j}, s[{R_WS}:{R_WS+3}], s{S_T + (qt>>1)} offen offset:{(qt&1)*2048} sc1')
        e('s_waitcnt vmcnt(0)')
        tag_check(g, [PG+k*4 for k in range(12)], V_T+3, V_T+4)
        e(f'v_cmp_ne_u32 vcc, 0, v{V_T+3}')
        e(f's_cbranch_vccz {Lpd}')
        spin_guard(g, Lpd)
        e('s_sleep 2')
        e(f's_branch {Lp}')
    else:
        for qt in range(4):
            for j in range(3):
                e(f'buffer_load_dwordx4 {vr(PG+(qt*3+j)*4)}, v{V_T+j}, s[{R_WS}:{R_WS+3}], s{S_T + (qt>>1)} offen offset:{(qt&1)*2048} sc1')
        e('s_waitcnt vmcnt(0)')
        for qt in range(4):
            lq = g.uid('pq'); lqd = g.uid('pqd')
            spin_init(g)
            g.lab(lq)
            tag_check(g, [PG+(qt*3+k)*4 for k in range(3)], V_T+3, V_T+4)
            e(f'v_cmp_ne_u32 vcc, 0, v{V_T+3}')
            e(f's_cbranch_vccz {lqd}')
            spin_guard(g, lqd)
            e(f's_sleep {O.QPOLL}')
            for j in range(3):
                e(f'buffer_load_dwordx4 {vr(PG+(qt*3+j)*4)}, v{V_T+j}, s[{R_WS}:{R_WS+3}], s{S_T + (qt>>1)} offen offset:{(qt&1)*2048} sc1')
            e('s_waitcnt vmcnt(0)')
            e(f's_branch {lq}')
            g.lab(lqd)
        Lpd = g.uid('ppd')
    g.lab(Lpd)
    stamp(g, 6)
    if O.SIDEMODE == 5:
        e('s_endpgm')
    def PM(qt): return PG + (qt*3+2)*4
    def PO(qt, j): return PG + (qt*3+j)*4
    e(f'v_max_f32 v{V_T+2}, v{PM(0)}, v{PM(1)}')
    e(f'v_max3_f32 v{V_T+2}, v{V_T+2}, v{PM(2)}, v{PM(3)}')
    for qt in range(4):
        e(f'v_sub_f32 v{PM(qt)}, v{PM(qt)}, v{V_T+2}')
        e(f'v_exp_f32 v{PM(qt)}, v{PM(qt)}')
    e('s_nop 0')
    e(f'v_mul_f32 v{V_T+3}, v{PM(0)+1}, v{PM(0)}')
    for qt in range(1, 4):
        e(f'v_fmac_f32 v{V_T+3}, v{PM(qt)+1}, v{PM(qt)}')
    e(f'v_rcp_f32 v{V_T+3}, v{V_T+3}')
    for j in range(2):
        for el in range(2):
            dst = V_T + 4 + j*2 + el
            e(f'v_mul_f32 v{dst}, v{PO(0,j)+el}, v{PM(0)}')
            for qt in range(1, 4):
                e(f'v_fmac_f32 v{dst}, v{PO(qt,j)+el}, v{PM(qt)}')
    for k in range(4):
        e(f'v_mul_f32 v{V_T+4+k}, v{V_T+4+k}, v{V_T+3}')
    e('s_branch L_od')
    g.lab('L_ffn')
    e(f'v_mul_u32_u24 v{V_T}, 3072, v{V_G}')
    e(f'v_lshl_add_u32 v{V_T}, v{V_N}, 4, v{V_T}')
    e(f's_mul_i32 s{S_T+2}, s{S_S1}, 80')
    e(f's_mul_i32 s{S_T+1}, s{S_WI}, 20')
    e(f's_add_u32 s{S_T+2}, s{S_T+2}, s{S_T+1}')
    e(f's_mul_i32 s{S_T}, s{S_T+2}, 3072')
    e(f's_lshl_b32 s{S_T+1}, s{S_C1}, 8')
    e(f's_add_u32 s{S_T}, s{S_T}, s{S_T+1}')
    FA = V_TILE + 48
    srd(g, R_W, S_WGATE, WG_BYTES)
    for t in range(5):
        e(f'buffer_load_dwordx4 {vr(FA+t*4)}, v{V_T}, s[{R_W}:{R_W+3}], s{S_T} offen {WPOL}')
        e(f's_add_u32 s{S_T}, s{S_T}, {4*3072}')
    e(f's_sub_u32 s{S_T}, s{S_T}, {20*3072}')
    srd(g, R_G, S_WUP, WG_BYTES)
    for t in range(5):
        e(f'buffer_load_dwordx4 {vr(FA+20+t*4)}, v{V_T}, s[{R_G}:{R_G+3}], s{S_T} offen {WPOL}')
        e(f's_add_u32 s{S_T}, s{S_T}, {4*3072}')
    XF = V_TILE + 96
    e(f'v_lshrrev_b32 v{V_T+1}, 3, v{V_N}')
    e(f'v_mul_u32_u24 v{V_T+1}, 640, v{V_T+1}')
    e(f'v_add_lshl_u32 v{V_T+1}, v{V_T+1}, v{V_G}, 1')
    e(f's_lshl_b32 s{S_T+1}, s{S_T+2}, 1')
    for t in range(5):
        for P in range(2):
            e(f'buffer_load_ushort v{XF + t*2 + P}, v{V_T+1}, s[{R_X}:{R_X+3}], s{S_T+1} offen offset:{t*8 + P*2560}')
    Lnd = g.uid('nd')
    e(f's_cmp_eq_u32 s{S_ROLE}, 1')
    e(f's_cbranch_scc0 {Lnd}')
    srd(g, R_W, S_WDOWN, WD_BYTES)
    e(f'v_mul_u32_u24 v{V_T+1}, 1280, v{V_G}')
    e(f'v_lshl_add_u32 v{V_T+1}, v{V_N}, 4, v{V_T+1}')
    e(f's_mul_i32 s{S_T}, s{S_S1}, 192')
    e(f's_mul_i32 s{S_T+1}, s{S_WI}, 48')
    e(f's_add_u32 s{S_T}, s{S_T}, s{S_T+1}')
    e(f's_mul_i32 s{S_T}, s{S_T}, 1280')
    e(f's_lshl_b32 s{S_T+1}, s{S_CB}, 8')
    e(f's_add_u32 s{S_T}, s{S_T}, s{S_T+1}')
    for t in range(12):
        e(f'buffer_load_dwordx4 {vr(TILE+t*4)}, v{V_T+1}, s[{R_W}:{R_W+3}], s{S_T} offen {WPOL}')
        if t < 11:
            e(f's_add_u32 s{S_T}, s{S_T}, {4*1280}')
    g.lab(Lnd)
    e('s_waitcnt vmcnt(0)')
    for k in range(10):
        e(f'v_lshl_or_b32 v{XF+k}, v{XF+k}, 16, v{XF+k}')
    FD = V_O
    for t in range(5):
        for P in range(2):
            for i in range(4):
                e(f'v_and_b32 v{V_PB + P*4 + i}, v{XF + t*2 + P}, v{V_MASK+i}')
        e('s_nop 1')
        for mat in range(2):
            for P in range(2):
                dd = FD + (mat*2+P)*4
                cc = '0' if t == 0 else vr(dd)
                e(f'v_mfma_f32_16x16x32_bf16 {vr(dd)}, {vr(FA + mat*20 + t*4)}, {vr(V_PB+P*4)}, {cc}')
    e('s_nop 7')
    e('s_nop 3')
    e(f's_lshl_b32 s{S_T}, s{S_WI}, 12')
    e(f'v_lshlrev_b32 v{V_T}, 4, v{V_LANE}')
    e(f'v_add_u32 v{V_T}, s{S_T}, v{V_T}')
    for k in range(4):
        e(f'ds_write_b128 v{V_T}, {vr(FD+k*4)} offset:{L_DP + k*1024}')
    subbarrier(g, C_SB3)
    pair_offset(g, V_T)
    for mat in range(2):
        for el in range(2):
            for wv in range(4):
                e(f'ds_read_b32 v{V_S + (mat*2+el)*4 + wv}, v{V_T} offset:{L_DP + wv*4096 + mat*2048 + el*16}')
    e('s_waitcnt lgkmcnt(0)')
    e(f's_lshl_b32 s{S_T}, s{S_C1}, 3')
    e(f's_add_u32 s{S_T}, s{S_T}, s{S_S1}')
    e(f's_lshl_b32 s{S_T}, s{S_T}, 13')
    e(f's_lshl_b32 s{S_T+1}, s{S_WI}, 10')
    e(f's_add_u32 s{S_T}, s{S_T}, s{S_T+1}')
    e(f's_add_u32 s{S_T}, s{S_T}, {WS_F1}')
    e(f'v_lshlrev_b32 v{V_T+1}, 4, v{V_LANE}')
    for mat in range(2):
        ga = V_TILE + 48 + mat*4
        for el in range(2):
            b = V_S + (mat*2+el)*4
            e(f'v_add_f32 v{b}, v{b}, v{b+1}')
            e(f'v_add_f32 v{b+2}, v{b+2}, v{b+3}')
            e(f'v_add_f32 v{ga+el}, v{b}, v{b+2}')
        e(f's_add_u32 s{S_T+1}, s{S_T}, {mat*4096}')
        store_gran(g, ga, V_T+1, S_T+1, 0)
    e(f's_cmp_eq_u32 s{S_ROLE}, 1')
    e('s_cbranch_scc1 L_ffn2')
    e(f's_cmp_ge_u32 s{S_C1}, 8')
    e('s_cbranch_scc1 L_end')
    e(f's_mul_i32 s{S_T+5}, s{S_S1}, 3')
    e(f's_add_u32 s{S_T+5}, s{S_T+5}, s{S_C1}')
    e(f's_sub_u32 s{S_T+5}, s{S_T+5}, 5')
    e(f's_lshr_b32 s{S_T}, s{S_T+5}, 1')
    e(f's_lshl_b32 s{S_T}, s{S_T}, 16')
    e(f's_and_b32 s{S_T+1}, s{S_T+5}, 1')
    e(f's_lshl_b32 s{S_T+1}, s{S_T+1}, 9')
    e(f's_add_u32 s{S_T}, s{S_T}, s{S_T+1}')
    e(f's_lshl_b32 s{S_T+1}, s{S_WI}, 10')
    e(f's_add_u32 s{S_T}, s{S_T}, s{S_T+1}')
    e(f's_add_u32 s{S_T}, s{S_T}, {WS_F1}')
    e(f'v_and_b32 v{V_T}, 31, v{V_LANE}')
    e(f'v_lshlrev_b32 v{V_T}, 4, v{V_T}')
    e(f'v_lshrrev_b32 v{V_T+1}, 5, v{V_LANE}')
    e(f'v_lshl_add_u32 v{V_T+1}, v{V_T+1}, 12, v{V_T}')
    HG = V_TILE + 48
    e(f'v_lshlrev_b32 v{V_T+3}, 13, v{V_LANE}')
    light_poll(g, V_T+3, S_T, 8, 32, HG)
    Lh = g.uid('hp'); Lhd = g.uid('hpd')
    spin_init(g)
    g.lab(Lh)
    e(f's_mov_b32 s{S_T+1}, s{S_T}')
    for sp in range(8):
        e(f'buffer_load_dwordx4 {vr(HG + sp*4)}, v{V_T+1}, s[{R_WS}:{R_WS+3}], s{S_T+1} offen sc1')
        if sp < 7:
            e(f's_add_u32 s{S_T+1}, s{S_T+1}, 8192')
    e('s_waitcnt vmcnt(0)')
    tag_check(g, [HG+k*4 for k in range(8)], V_T+3, V_T+4)
    e(f'v_cmp_ne_u32 vcc, 0, v{V_T+3}')
    e(f's_cbranch_vccz {Lhd}')
    spin_guard(g, Lhd)
    e('s_sleep 16')
    e(f's_branch {Lh}')
    g.lab(Lhd)
    for el in range(2):
        for sp in range(1, 8):
            e(f'v_add_f32 v{HG+el}, v{HG+el}, v{HG+sp*4+el}')
    e(f'v_add_u32 v{V_T+2}, 32, v{V_LANE}')
    e(f'v_and_b32 v{V_T+2}, 63, v{V_T+2}')
    e(f'v_lshlrev_b32 v{V_T+2}, 2, v{V_T+2}')
    e(f'ds_bpermute_b32 v{HG+4}, v{V_T+2}, v{HG}')
    e(f'ds_bpermute_b32 v{HG+5}, v{V_T+2}, v{HG+1}')
    e('s_waitcnt lgkmcnt(0)')
    GH = HG + 8
    for el in range(2):
        gg = HG + el; uu = HG + 4 + el
        e(f'v_mul_f32 v{V_T+2}, v{gg}, v{gg}')
        e(f'v_mul_f32 v{V_T+2}, {f2u(0.044715):#x}, v{V_T+2}')
        e(f'v_add_f32 v{V_T+2}, 1.0, v{V_T+2}')
        e(f'v_mul_f32 v{V_T+2}, v{V_T+2}, v{gg}')
        e(f'v_mul_f32 v{V_T+2}, {f2u(-2.0*0.7978845608028654*1.4426950408889634):#x}, v{V_T+2}')
        e(f'v_exp_f32 v{V_T+2}, v{V_T+2}')
        e('s_nop 0')
        e(f'v_add_f32 v{V_T+2}, 1.0, v{V_T+2}')
        e(f'v_rcp_f32 v{V_T+2}, v{V_T+2}')
        e('s_nop 0')
        e(f'v_mul_f32 v{V_T+2}, v{V_T+2}, v{gg}')
        e(f'v_mul_f32 v{GH+el}, v{V_T+2}, v{uu}')
    e(f's_lshl_b32 s{S_T}, s{S_T+5}, 2')
    e(f's_add_u32 s{S_T}, s{S_T}, s{S_WI}')
    e(f's_lshl_b32 s{S_T}, s{S_T}, 9')
    e(f's_add_u32 s{S_T}, s{S_T}, {WS_H}')
    e('s_mov_b32 exec_hi, 0')
    store_gran(g, GH, V_T, S_T, 0)
    e('s_endpgm')
    g.lab('L_ffn2')
    HG = V_TILE + 48
    e(f's_mul_i32 s{S_T}, s{S_S1}, 12')
    e(f's_add_u32 s{S_T}, s{S_T}, s{S_WI}')
    e(f's_lshl_b32 s{S_T}, s{S_T}, 9')
    e(f's_add_u32 s{S_T}, s{S_T}, {WS_H}')
    e(f'v_and_b32 v{V_T}, 31, v{V_LANE}')
    e(f'v_lshlrev_b32 v{V_T}, 4, v{V_T}')
    e(f'v_lshrrev_b32 v{V_T+1}, 5, v{V_LANE}')
    e(f'v_lshl_add_u32 v{V_T+1}, v{V_T+1}, 11, v{V_T}')
    e(f'v_add_u32 v{V_T+2}, 4096, v{V_T}')
    Lh2 = g.uid('h2'); Lh2d = g.uid('h2d')
    spin_init(g)
    g.lab(Lh2)
    e(f'buffer_load_dwordx4 {vr(HG)}, v{V_T+1}, s[{R_WS}:{R_WS+3}], s{S_T} offen sc1')
    e(f'buffer_load_dwordx4 {vr(HG+4)}, v{V_T+2}, s[{R_WS}:{R_WS+3}], s{S_T} offen sc1')
    e('s_waitcnt vmcnt(0)')
    tag_check(g, [HG, HG+4], V_T+3, V_T+4)
    e(f'v_cmp_ne_u32 vcc, 0, v{V_T+3}')
    e(f's_cbranch_vccz {Lh2d}')
    spin_guard(g, Lh2d)
    e('s_sleep 32')
    e(f's_branch {Lh2}')
    g.lab(Lh2d)
    e(f'v_mov_b32 v{V_T+4}, v{HG}')
    e(f'v_mov_b32 v{V_T+5}, v{HG+1}')
    e(f'v_mov_b32 v{V_T+6}, v{HG+4}')
    e(f'v_mov_b32 v{V_T+7}, v{HG+5}')
    e(f'v_sub_f32 v{V_GATE}, 1.0, v{V_GATE}')
    g.lab('L_od')
    e(f's_mul_i32 s{S_T}, s{S_WI}, 768')
    e(f'v_lshlrev_b32 v{V_T}, 3, v{V_LANE}')
    e(f'v_add_u32 v{V_T}, s{S_T}, v{V_T}')
    for k in range(4):
        e(f'v_cvt_pk_bf16_f32 v{V_T+4+k}, v{V_T+4+k}, v{V_T+4+k}')
    e(f'ds_write_b64 v{V_T}, v[{V_T+4}:{V_T+5}] offset:{L_OD}')
    e('s_mov_b32 exec_hi, 0')
    e(f'ds_write_b64 v{V_T}, v[{V_T+6}:{V_T+7}] offset:{L_OD + 512}')
    e('s_mov_b64 exec, -1')
    subbarrier(g, C_SB1)
    e(f'v_lshrrev_b32 v{V_T}, 3, v{V_N}')
    e(f'v_mul_u32_u24 v{V_T}, 192, v{V_T}')
    e(f'v_add_u32 v{V_T}, v{V_T}, v{V_G}')
    e(f's_mul_i32 s{S_T}, s{S_WI}, 48')
    e(f'v_add_u32 v{V_T}, s{S_T}, v{V_T}')
    e(f'v_lshlrev_b32 v{V_T}, 2, v{V_T}')
    BV = V_TILE + 96
    for t in range(12):
        for P in range(2):
            e(f'ds_read_b32 v{BV + t*2 + P}, v{V_T} offset:{L_OD + t*16 + P*1536}')
    e('s_waitcnt vmcnt(0) lgkmcnt(0)')
    PD = V_O
    for t in range(12):
        for P in range(2):
            for i in range(4):
                e(f'v_and_b32 v{V_QB + (t&1)*8 + P*4 + i}, v{BV + t*2 + P}, v{V_MASK+i}')
        e('s_nop 1')
        for P in range(2):
            dd = PD + P*4
            cc = '0' if t == 0 else vr(dd)
            e(f'v_mfma_f32_16x16x32_bf16 {vr(dd)}, {vr(TILE + t*4)}, {vr(V_QB + (t&1)*8 + P*4)}, {cc}')
    e('s_nop 7')
    e('s_nop 3')
    e(f's_lshl_b32 s{S_T}, s{S_WI}, 11')
    e(f'v_lshlrev_b32 v{V_T}, 4, v{V_LANE}')
    e(f'v_add_u32 v{V_T}, s{S_T}, v{V_T}')
    for P in range(2):
        e(f'ds_write_b128 v{V_T}, {vr(PD+P*4)} offset:{L_DP2 + P*1024}')
    subbarrier(g, C_SB2)
    pair_offset(g, V_T)
    for el in range(2):
        for wv in range(4):
            e(f'ds_read_b32 v{V_S + el*4 + wv}, v{V_T} offset:{L_DP2 + wv*2048 + el*16}')
    e('s_waitcnt lgkmcnt(0)')
    e(f's_mul_i32 s{S_T}, s{S_CB}, 40')
    e(f's_add_u32 s{S_T}, s{S_T}, s{S_SRC}')
    e(f's_lshl_b32 s{S_T}, s{S_T}, 12')
    e(f's_lshl_b32 s{S_T+1}, s{S_WI}, 10')
    e(f's_add_u32 s{S_T}, s{S_T}, s{S_T+1}')
    e(f's_add_u32 s{S_T}, s{S_T}, {WS_OUTP}')
    e(f'v_lshlrev_b32 v{V_T+1}, 4, v{V_LANE}')
    ga = V_TILE + 48
    for el in range(2):
        b = V_S + el*4
        e(f'v_add_f32 v{b}, v{b}, v{b+1}')
        e(f'v_add_f32 v{b+2}, v{b+2}, v{b+3}')
        e(f'v_add_f32 v{b}, v{b}, v{b+2}')
        e(f'v_mul_f32 v{ga+el}, v{b}, v{V_GATE}')
    store_gran(g, ga, V_T+1, S_T, 0)
    e(f's_cmp_eq_u32 s{S_ROLE}, 0')
    e('s_cbranch_scc0 L_end')
    e(f's_cmp_eq_u32 s{S_WI}, 0')
    e('s_cbranch_scc0 L_end')
    if O.SIDEMODE == 6:
        e('s_endpgm')
    e(f's_lshr_b32 s{S_T}, s{S_H}, 3')
    e(f's_and_b32 s{S_T+1}, s{S_H}, 7')
    e(f's_mul_i32 s{S_T+2}, s{S_CB}, {40*4096}')
    e(f's_lshl_b32 s{S_T+3}, s{S_T}, 10')
    e(f's_add_u32 s{S_T+2}, s{S_T+2}, s{S_T+3}')
    e(f's_lshl_b32 s{S_T+3}, s{S_T+1}, 7')
    e(f's_add_u32 s{S_T+2}, s{S_T+2}, s{S_T+3}')
    e(f's_add_u32 s{S_T+2}, s{S_T+2}, {WS_OUTP}')
    e(f'v_lshrrev_b32 v{V_T}, 3, v{V_LANE}')
    e(f'v_lshlrev_b32 v{V_T}, 12, v{V_T}')
    e(f'v_and_b32 v{V_T+1}, 7, v{V_LANE}')
    e(f'v_lshl_add_u32 v{V_T}, v{V_T+1}, 4, v{V_T}')
    Lf = g.uid('fp'); Lfd = g.uid('fpd')
    FR = V_TILE + 64
    spin_init(g)
    g.lab(Lf)
    e(f's_mov_b32 s{S_T+4}, s{S_T+2}')
    for k in range(5):
        e(f'buffer_load_dwordx4 {vr(FR+k*4)}, v{V_T}, s[{R_WS}:{R_WS+3}], s{S_T+4} offen sc1')
        if k < 4:
            e(f's_add_u32 s{S_T+4}, s{S_T+4}, {8*4096}')
    e('s_waitcnt vmcnt(0)')
    tag_check(g, [FR+k*4 for k in range(5)], V_T+2, V_T+3)
    e(f'v_cmp_ne_u32 vcc, 0, v{V_T+2}')
    e(f's_cbranch_vccz {Lfd}')
    spin_guard(g, Lfd)
    e('s_sleep 1')
    e(f's_branch {Lf}')
    g.lab(Lfd)
    for k in range(1, 5):
        e(f'v_add_f32 v{FR}, v{FR}, v{FR+k*4}')
        e(f'v_add_f32 v{FR+1}, v{FR+1}, v{FR+k*4+1}')
    for xm in (8, 16, 32):
        e(f'v_xor_b32 v{V_T+2}, {xm}, v{V_LANE}')
        e(f'v_lshlrev_b32 v{V_T+2}, 2, v{V_T+2}')
        e(f'ds_bpermute_b32 v{V_T+3}, v{V_T+2}, v{FR}')
        e(f'ds_bpermute_b32 v{V_T+4}, v{V_T+2}, v{FR+1}')
        e('s_waitcnt lgkmcnt(0)')
        e(f'v_add_f32 v{FR}, v{FR}, v{V_T+3}')
        e(f'v_add_f32 v{FR+1}, v{FR+1}, v{V_T+4}')
    e(f'v_cvt_pk_bf16_f32 v{FR}, v{FR}, v{FR+1}')
    srd(g, R_W, S_OUT, 5120)
    e(f's_mul_i32 s{S_T}, s{S_T}, 640')
    e(f's_lshl_b32 s{S_T+3}, s{S_CB}, 7')
    e(f's_add_u32 s{S_T}, s{S_T}, s{S_T+3}')
    e(f's_lshl_b32 s{S_T+1}, s{S_T+1}, 4')
    e(f's_add_u32 s{S_T}, s{S_T}, s{S_T+1}')
    e(f's_lshl_b32 s{S_T}, s{S_T}, 1')
    e(f'v_lshlrev_b32 v{V_T}, 2, v{V_LANE}')
    e('s_mov_b64 exec, 0xff')
    e(f'buffer_store_dword v{FR}, v{V_T}, s[{R_W}:{R_W+3}], s{S_T} offen')
    e('s_mov_b64 exec, -1')
    stamp(g, 7)
    e(f's_cmp_eq_u32 s2, 0')
    e('s_cbranch_scc0 L_end')
    e(f'v_mov_b32 v{V_T}, s{S_TAG}')
    e(f'v_mov_b32 v{V_T+1}, s{S_TAG+1}')
    e(f'v_mov_b32 v{V_T+2}, {WS_EPOCH}')
    e('s_mov_b64 exec, 1')
    e(f'buffer_store_dwordx2 v[{V_T}:{V_T+1}], v{V_T+2}, s[{R_WS}:{R_WS+3}], 0 offen sc1')
    g.lab('L_end')
    e('s_endpgm')
    return g


HEADER = open('gated_mix__mha_block_cached__glu_gated_geglu__decode.s.ref').read().split('\n')

def emit(path):
    g = build()
    out = []
    for line in HEADER:
        if line.startswith('; @launch'):
            out.append(f'; @launch grid=(256,1,1) block=(512,1,1) lds={LDS_BYTES}')
            out += [
                '; Design (generated by work/gen11.py, hand-designed):',
                ';  256 persistent workgroups (one per CU) x 8 waves. WG = (b0, head h, quarter qt); waves 0-3 stream K/V of (b0,h),',
                ';  waves 4-7 stream (b0+2,h). K/V tiles (16 keys) go straight to VGPRs in MFMA operand layout (nt loads, 4 tiles in',
                ';  flight per wave); QK^T and PV both run on v_mfma_f32_16x16x32_bf16 with selection-matrix B operands; online softmax',
                ';  with true running max (deferred rescale, threshold 2^8).  q = x@wq is computed cooperatively by the 8 WGs of a head.',
                ';  All cross-WG hand-offs are 16-byte granules {f0,f1,tag64} written/read with sc1; the tag derives from an epoch word',
                ';  in d_ws that only distinguishes this launch from earlier ones.  The key ranges of waves 4-7 are re-split among the 4',
                ';  WGs of a (b,h) from the measured phase-1 finish times (load balance only; any split gives the same result).',
                ';  Side jobs (FFN gate/up/down, gate sigmoid, wo projection, final sum) are done by waves 0-3 after their streaming.',
            ]
            continue
        out.append(line)
        if line.startswith(NAME + ':'):
            break
    out += g.L
    out += ['.section .rodata,"a"', '.p2align 6', f'.amdhsa_kernel {NAME}',
            '  .amdhsa_next_free_vgpr 256', '  .amdhsa_next_free_sgpr 102', '  .amdhsa_accum_offset 256',
            '  .amdhsa_group_segment_fixed_size 0', '  .amdhsa_kernarg_size 104', '  .amdhsa_user_sgpr_count 2',
            '  .amdhsa_user_sgpr_kernarg_segment_ptr 1', '  .amdhsa_system_sgpr_workgroup_id_x 1', '.end_amdhsa_kernel']
    open(path, 'w').write('\n'.join(out) + '\n')

if __name__ == '__main__':
    args = sys.argv[1:]
    path = 'gated_mix__mha_block_cached__glu_gated_geglu__decode.s'
    for a in args:
        if a == '--ts': O.TS = True
        elif a.startswith('--D='): O.D = int(a[4:])
        elif a.startswith('--pace='): O.PACE = int(a[7:])
        elif a == '--noprio': O.PRIO = False
        elif a == '--noq': O.NOQ = True
        elif a == '--nobal': O.BAL2 = False
        elif a == '--nopipe': O.PIPE = False
        elif a == '--nosideb': O.SIDEB = False
        elif a.startswith('--gamma='): O.GAMMA = float(a[8:])
        elif a.startswith('--flex='): globals().__setitem__('FLEX', int(a[7:]))
        elif a.startswith('--qval='): O.QVAL = int(a[7:],16)
        elif a.startswith('--delayq='): O.DELAYQ = int(a[9:])
        elif a.startswith('--delay='): O.DELAY = int(a[8:])
        elif a == '--warm': O.WARM = True
        elif a.startswith('--qpoll='): O.QPOLL = int(a[8:])
        elif a == '--nostore': O.NOSTORE = True
        elif a.startswith('--pevery='): O.PEVERY = int(a[9:])
        elif a.startswith('--balmode='): O.BALMODE = int(a[10:])
        elif a.startswith('--kpol='): O.KPOL = [x.replace('_',' ') for x in a[7:].split(',')]
        elif a.startswith('--vpol='): O.VPOL = [x.replace('_',' ') for x in a[7:].split(',')]
        elif a == '--dts': O.DTS = True
        elif a.startswith('--side='): O.SIDEMODE = int(a[7:])
        elif a == '--noside': O.NOSIDE = True
        elif a == '--nocomp': O.NOCOMP = True
        else: path = a
    emit(path)
    print('LDS', LDS_BYTES, 'used', LDS_USED)
```
